```python
import torch

def _softmax(x, axis=-1):
    return torch.softmax(x, dim=axis)
def _gelu(x):
    return torch.nn.functional.gelu(x, approximate="tanh")
def _silu(x):
    return torch.nn.functional.silu(x)
def _sigmoid(x):
    return torch.sigmoid(x)
def _layernorm(x, axis=-1, eps=1e-5):
    m = x.mean(dim=axis, keepdim=True)
    v = x.var(dim=axis, keepdim=True, unbiased=False)
    return (x - m) / torch.sqrt(v + eps)
def _scatter_add(tgt, idx, src, axis=0):
    return tgt.clone().index_add_(axis, idx, src)
def _segment_sum(src, seg, n):
    out = torch.zeros((n,) + src.shape[1:], dtype=src.dtype)
    return out.index_add_(0, seg, src)
def _pad(x, pw):
    flat = tuple(v for pair in reversed(pw) for v in pair)
    return torch.nn.functional.pad(x, flat)

kernel_name = 'gated_mix__mha_block__dense_activation_mish__prompt'

def setup_inputs():

    _w = (lambda a: (lambda t: t.to(torch.bfloat16) if t.is_floating_point() else t)(torch.as_tensor(a)))
    def _A_setup():
        B, S, D, H = 1, 2048, 640, 32
        return {
            "x": _w((lambda *s: torch.randn(*s, dtype=torch.bfloat16) * 0.05)(B, S, D)),
            "wqkv": _w((lambda *s: torch.randn(*s, dtype=torch.bfloat16) * 0.8)(D, 3 * D)),
            "wo": _w((lambda *s: torch.randn(*s, dtype=torch.bfloat16) * 0.05)(D, D)),
        }
    _A_in = _A_setup()

    def _B_setup():
        B, S, D, F = 1, 2048, 640, 1536
        return {
            "x": _w((lambda *s: torch.randn(*s, dtype=torch.bfloat16) * 0.05)(B, S, D)),
            "w1": _w((lambda *s: torch.randn(*s, dtype=torch.bfloat16) * 12.8)(D, F) * (D ** -0.5)),
            "b1": _w((lambda *s: torch.randn(*s, dtype=torch.bfloat16) * 0.2)(F)),
            "w2": _w((lambda *s: torch.randn(*s, dtype=torch.bfloat16) * 0.2)(F, D) * (F ** -0.5)),
        }
    _B_in = _B_setup()

    return {
        "A_x": _A_in["x"],
        "A_wqkv": _A_in["wqkv"],
        "A_wo": _A_in["wo"],
        "B_x": _B_in["x"],
        "B_w1": _B_in["w1"],
        "B_b1": _B_in["b1"],
        "B_w2": _B_in["w2"],
        "gate_w": _w((lambda *s: torch.randn(*s, dtype=torch.bfloat16) * 0.05)(640) * 16.0),
    }

def reference(A_x, A_wqkv, A_wo, B_x, B_w1, B_b1, B_w2, gate_w):
    def _A_ref(x, wqkv, wo):
        B, S, D = x.shape
        H = 32
        Dh = D // H
        qkv = (lambda x, *d: x.permute(*d))((x @ wqkv).reshape(B, S, 3, H, Dh), 2, 0, 3, 1, 4)
        q, k, v = qkv[0], qkv[1], qkv[2]
        scores = torch.einsum("bhqd,bhkd->bhqk", q, k) * (Dh ** -0.5)
        p = _softmax(scores, axis=-1)
        o = torch.einsum("bhqk,bhkd->bhqd", p, v)
        return (lambda x, *d: x.permute(*d))(o, 0, 2, 1, 3).reshape(B, S, D) @ wo

    def _B_ref(x, w1, b1, w2):
        h = torch.einsum("bsd,df->bsf", x, w1) + b1
        sp = torch.log1p(torch.exp(-torch.abs(h))) + torch.where(h > 0, h, torch.zeros_like(h))
        act = h * torch.tanh(sp)
        return torch.einsum("bsf,fd->bsd", act, w2)

    x = A_x
    g = _sigmoid((x * gate_w).sum(-1, keepdims=True))
    a = _A_ref(x, A_wqkv, A_wo)
    b = _B_ref(x, B_w1, B_b1, B_w2)
    return g * a + (1 - g) * b
```

```python
import re

TRANS = ("v_exp_f32","v_log_f32","v_rcp_f32","v_rsq_f32","v_sqrt_f32","v_sin_f32","v_cos_f32","v_exp_f16","v_rcp_iflag_f32")
def mfma_passes(op):
    if "_2b_" in op: return 16
    if "_4b_" in op: return 8
    if "_16b_" in op: return 2
    if "32x32" in op: return 8
    if "16x16" in op: return 4
    raise ValueError(op)

_reg = re.compile(r"^-?\|?(?:abs\()?([vas])(?:(\d+)|\[(\d+):(\d+)\])\)?\|?$")
def regs(tok):
    tok = tok.strip()
    if tok == "vcc": return [("s", 106), ("s", 107)]
    if tok == "exec": return [("s", 126), ("s", 127)]
    if tok == "m0": return [("s", 124)]
    m = _reg.match(tok)
    if not m: return []
    c = m.group(1)
    if m.group(2) is not None: return [(c, int(m.group(2)))]
    return [(c, i) for i in range(int(m.group(3)), int(m.group(4)) + 1)]

class Ins:
    def __init__(self, text):
        self.text = text
        t = text.split(";")[0].strip()
        self.op = t.split()[0] if t else ""
        rest = t[len(self.op):].strip()
        ops = [x.strip() for x in rest.split(",")] if rest else []
        if ops: ops[-1] = ops[-1].split()[0] if ops[-1] else ops[-1]
        self.ops = ops
        op = self.op
        self.mfma = op.startswith("v_mfma") or op.startswith("v_smfmac")
        self.valu = op.startswith("v_") and not self.mfma
        self.salu = op.startswith("s_")
        self.ds = op.startswith("ds_")
        self.vmem = op.startswith("buffer_") or op.startswith("global_")
        self.lds_dma = self.vmem and (" lds" in t or "load_lds" in op)
        self.trans = any(op.startswith(x) for x in TRANS)
        R = [regs(o) for o in ops]
        self.w = []; self.r = []
        if self.mfma:
            self.w = R[0]; self.a = R[1]; self.b = R[2]; self.c = R[3]; self.r = R[1] + R[2] + R[3]
            self.passes = mfma_passes(op)
        elif self.valu:
            if op.startswith("v_cmp"):
                self.w = R[0]; self.r = sum(R[1:], [])
            elif op.startswith("v_permlane") and "swap" in op or op.startswith("v_swap"):
                self.w = R[0] + R[1]; self.r = R[0] + R[1]
            elif "_co_" in op or op.startswith("v_div_scale"):
                self.w = R[0] + R[1]; self.r = sum(R[2:], [])
            else:
                self.w = R[0]; self.r = sum(R[1:], [])
                if op.startswith(("v_fmac", "v_pk_fmac", "v_writelane", "v_dot2c")) or "PRESERVE" in t: self.r = self.r + R[0]
        elif self.ds:
            if op.startswith(("ds_read", "ds_bpermute", "ds_permute", "ds_swizzle")) or "_rtn_" in op:
                self.w = R[0]; self.r = sum(R[1:], [])
            else:
                self.r = sum(R, [])
        elif self.vmem:
            if self.lds_dma: self.r = sum(R, []) + [("s", 124)]
            elif "load" in op: self.w = R[0]; self.r = sum(R[1:], [])
            elif "atomic" in op and (" sc0" in t):
                self.w = R[0]; self.r = sum(R, [])
            else: self.r = sum(R, [])
            self.store_data = []
            if "store" in op and ("x3" in op or "x4" in op):
                self.store_data = R[0] if op.startswith("buffer_") else R[1]
        elif self.salu:
            if op.startswith(("s_cmp", "s_cbranch", "s_branch", "s_waitcnt", "s_nop", "s_barrier", "s_endpgm", "s_setprio", "s_sleep")):
                self.r = sum(R, [])
            else:
                self.w = R[0] if R else []; self.r = sum(R[1:], [])
        self.states = 1
        if op == "s_nop": self.states = int(ops[0], 0) + 1

def need(p, c):
    n = 0
    pw = set(p.w); cr = set(c.r); cw = set(c.w)
    vw = {x for x in pw if x[0] in "va"}
    if p.mfma:
        tab = lambda a: a[{2:0,4:1,8:2,16:3}[p.passes]]
        if c.mfma:
            if vw & (set(c.a) | set(c.b)): n = max(n, tab((5,8,12,20)))
            if vw & set(c.c):
                if c.c == p.w and c.passes == p.passes: n = max(n, tab((2,0,0,0)))
                else: n = max(n, tab((4,6,10,18)))
            elif vw & cw: n = max(n, tab((4,6,10,18)))
        elif c.valu or c.ds or c.vmem:
            if vw & (cr | cw): n = max(n, tab((5,8,12,20)))
        if c.valu and set(p.c) & cw: n = max(n, tab((1,3,7,15)))
    if p.valu:
        if c.mfma and vw & cr: n = max(n, 2)
        if p.trans and c.valu and not c.trans and vw & cr: n = max(n, 1)
        if c.op.startswith("v_permlane") and vw & cr: n = max(n, 2)
        if c.op.startswith(("v_readlane", "v_readfirstlane")) and vw & cr: n = max(n, 1)
        if "dpp" in c.text and vw & cr: n = max(n, 2)
        if ("sdwa" in p.op or "op_sel" in p.text) and c.valu and vw & (cr | cw): n = max(n, 1)
        sw = {x for x in pw if x[0] == "s"}
        if sw:
            if c.vmem and sw & cr: n = max(n, 5)
            if c.valu and sw & cr: n = max(n, 4 if c.op.startswith(("v_readlane", "v_writelane", "v_div_fmas")) else 2)
            if p.op.startswith("v_cmpx") and c.mfma: n = max(n, 4)
    if p.salu and ("s", 124) in pw and c.lds_dma: n = max(n, 1)
    if p.vmem and getattr(p, "store_data", None) and set(p.store_data) & cw: n = max(n, 2)
    return n

class Asm:
    def __init__(self):
        self.lines = []
    def __call__(self, text):
        for l in text.strip("\n").split("\n"):
            l = l.strip()
            if l: self.lines.append(l)
    def label(self, name): self.lines.append(name + ":")
    def text(self): return "\n".join(("" if l.endswith(":") or l.startswith(".") else "    ") + l for l in self.lines) + "\n"

def check(lines, verbose=True):
    ins = []; labels = {}
    for l in lines:
        t = l.split(";")[0].strip()
        if not t or t.startswith("."): continue
        if t.endswith(":"): labels[t[:-1]] = len(ins); continue
        ins.append(Ins(l))
    def succ(i):
        I = ins[i]
        if I.op == "s_endpgm": return []
        if I.op == "s_branch": return [labels[I.ops[0]]]
        if I.op.startswith("s_cbranch"): return [i + 1, labels[I.ops[0]]]
        return [i + 1] if i + 1 < len(ins) else []
    bad = set()
    for i, p in enumerate(ins):
        if not (p.mfma or p.valu or (p.salu and ("s", 124) in p.w) or (p.vmem and getattr(p, "store_data", None))): continue
        stack = [(j, 0) for j in succ(i)]; seen = {}
        while stack:
            j, d = stack.pop()
            if d >= 20 or j >= len(ins) or seen.get(j, 99) <= d: continue
            seen[j] = d
            c = ins[j]
            n = need(p, c)
            if n > d: bad.add((i, j, n, d))
            for k in succ(j): stack.append((k, d + c.states))
    if verbose:
        for i, j, n, d in sorted(bad):
            print(f"HAZARD need {n} have {d}:\n   [{i}] {ins[i].text}\n   [{j}] {ins[j].text}")
    return len(bad)

def kernel_wrap(name, body, vgprs, sgprs=102, accum=None):
    accum = accum or ((vgprs + 3) // 4 * 4)
    code = f".globl {name}\n.p2align 8\n.type {name},@function\n{name}:\n{body}"
    desc = f""".p2align 6
.amdhsa_kernel {name}
  .amdhsa_next_free_vgpr {vgprs}
  .amdhsa_next_free_sgpr {sgprs}
  .amdhsa_accum_offset {accum}
  .amdhsa_group_segment_fixed_size 0
  .amdhsa_kernarg_size 88
  .amdhsa_user_sgpr_count 2
  .amdhsa_user_sgpr_kernarg_segment_ptr 1
  .amdhsa_system_sgpr_workgroup_id_x 1
.end_amdhsa_kernel
"""
    return code, desc

def module(kernels, header=""):
    out = [header] if header else []
    for n, b, v, g, blk, lds in kernels:
        out.append(f"; @launch kernel={n} grid=({g},1,1) block=({blk},1,1) lds={lds}")
    out.append('.amdgcn_target "amdgcn-amd-amdhsa--gfx950"\n.text')
    descs = []; done = set()
    for n, b, v, g, blk, lds in kernels:
        if n in done: continue
        done.add(n)
        c, d = kernel_wrap(n, b, v)
        out.append(c); descs.append(d)
    out.append('.section .rodata,"a"')
    out += descs
    return "\n".join(out)

TS_OFF = 200 << 20
class Stamps:
    def __init__(self, a, on, base=60):
        self.a = a; self.on = on; self.n = 0; self.base = base
    def __call__(self):
        if not self.on: return
        r = self.base + 4*self.n
        self.a(f"s_memtime s[{r}:{r+1}]\ns_memrealtime s[{r+2}:{r+3}]")
        self.n += 1
    def dump(self, wave_sgpr, nwaves, vt, slot=0):
        if not self.on: return
        a = self.a
        a(f"""
        s_waitcnt lgkmcnt(0)
        s_load_dwordx2 s[96:97], s[0:1], 80
        s_mul_i32 s100, s2, {nwaves}
        s_add_u32 s100, s100, s{wave_sgpr}
        s_lshl_b32 s100, s100, 7
        s_add_u32 s100, s100, {TS_OFF + slot*(1<<20)}
        s_mov_b32 s98, 0x10000000
        s_mov_b32 s99, 0x20000
        s_mov_b64 exec, 1
        v_mov_b32 v{vt+2}, s100
        s_waitcnt lgkmcnt(0)
        """)
        for i in range(self.n):
            r = self.base + 4*i
            a(f"v_mov_b32 v{vt}, s{r}\nv_mov_b32 v{vt+1}, s{r+2}\nbuffer_store_dwordx2 v[{vt}:{vt+1}], v{vt+2}, s[96:99], 0 offen offset:{8*i}\ns_nop 1")
        a("s_waitcnt vmcnt(0)")
```

```python
from asm import *
from layout import *

SX, SY, O, NEGM = 0, 32, 64, 80
KA, KB, KT, QM, QT = 96, 100, 104, 106, 110
VF = 112
P = (128, 132)
AK, AKT, AV = 136, 137, 138
LK, LKT, LV = 139, 140, 141
DOFF = 142
TMP = 143
OOFF, OTOFF = 151, 152
NV = 153
NSLOT = 4
OPT = set()
FLAG_LDS = NSLOT*CHUNK
LDS_BYTES = FLAG_LDS + 64

def vr(a, n): return f"v[{a}:{a+n-1}]"

def dma_chunk(a, doff=1):
    a(f"s_add_u32 m0, s16, s17\ns_add_u32 s16, s16, {CHUNK}")
    for j in range(4): a(f"buffer_load_dwordx4 v{doff}, s[4:7], s15 offen offset:{1024*j} lds")
    a(f"s_add_u32 m0, m0, 4096\ns_add_u32 s21, s15, 4096")
    a(f"buffer_load_dwordx4 v{doff}, s[4:7], s21 offen lds")
    a(f"s_mov_b32 exec_hi, 0\nbuffer_load_dwordx4 v{doff}, s[4:7], s21 offen offset:1024 lds\ns_mov_b64 exec, -1")
    a(f"s_add_u32 s15, s15, {CHUNK}\ns_cmp_eq_u32 s16, {NSLOT*CHUNK}\ns_cselect_b32 s16, 0, s16")

def cinit(): return "0" if "czero" in OPT else vr(NEGM,16)
def rd_ka(li): return f"ds_read_b128 {vr(KA,4)}, v{AK} offset:{li*2048}"
def rd_kb(li): return f"ds_read_b128 {vr(KB,4)}, v{AK} offset:{li*2048+1024}"
def rd_kt(li): return f"ds_read_b64 {vr(KT,2)}, v{AKT} offset:{li*512}"
def rd_v(g, li):
    o = (li*64 + g*16)*48
    return [f"ds_read_b64_tr_b16 {vr(VF+4*g,2)}, v{AV} offset:{o}",
            f"ds_read_b64_tr_b16 {vr(VF+4*g+2,2)}, v{AV} offset:{o+8*48}"]
def qk_a(Y, c=None): return f"v_mfma_f32_32x32x16_bf16 {vr(Y,16)}, {vr(KA,4)}, {vr(QM,4)}, {c or cinit()}"
def qk_b(Y, c=None): return f"v_mfma_f32_32x32x16_bf16 {vr(Y+16,16)}, {vr(KB,4)}, {vr(QM,4)}, {c or cinit()}"
def qk_t(Y): return f"v_mfma_f32_32x32x4_2b_bf16 {vr(Y,32)}, {vr(KT,2)}, {vr(QT,2)}, {vr(Y,32)}"
def pv(g): return f"v_mfma_f32_32x32x16_bf16 {vr(O,16)}, {vr(VF+4*g,4)}, {vr(P[g&1],4)}, {vr(O,16)}"
def exps(X, g, lo, hi): return [f"v_exp_f32 v{X+8*g+j}, v{X+8*g+j}" for j in range(lo, hi)]
def cvts(X, g): return [f"v_cvt_pk_bf16_f32 v{P[g&1]+j}, v{X+8*g+2*j}, v{X+8*g+2*j+1}" for j in range(4)]

class LdsQ:
    def __init__(self, a): self.a = a; self.q = []; self.on = False
    def rd(self, tag, ins):
        if "nords" in OPT and self.on: return
        for t in (ins if isinstance(ins, list) else [ins]):
            self.a(t); self.q.append(tag)
    def wait(self, tag):
        if tag not in self.q: return
        last = max(i for i, t in enumerate(self.q) if t == tag)
        n = len(self.q) - 1 - last
        assert n <= 15
        self.a(f"s_waitcnt lgkmcnt({n})")
        self.q = self.q[last+1:]

def iteration(a, q, par, kli, vli_cur, vli_next, first=False, do_qk=True, do_k=True, do_vnext=True, v_switch=None, prio=None):
    X, Y = (SX, SY) if par == 0 else (SY, SX)
    E = lambda l: [a(x) for x in l]
    pr = lambda n: a(f"s_setprio {n}") if "bal" in OPT else None
    pr2 = lambda n: a(f"s_setprio {n}") if "bal2" in OPT else None
    if prio is not None and 'desc' in OPT: a(f's_setprio {prio}')
    pr(1); pr2(1)
    q.wait("v0")
    if do_qk:
        q.wait("kb"); a(qk_a(Y))
        if do_k: q.rd("ka", rd_ka(kli))
    E(exps(X, 0, 0, 3))
    if not first:
        a(pv(3)); q.rd("v3", rd_v(3, vli_cur))
    if v_switch: a(v_switch)
    E(exps(X, 0, 3, 8)); E(cvts(X, 0))
    pr2(0)
    if do_qk:
        a(qk_b(Y))
        if do_k: q.rd("kb", rd_kb(kli))
    E(exps(X, 1, 0, 3))
    a(pv(0))
    if do_vnext: q.rd("v0", rd_v(0, vli_next))
    E(exps(X, 1, 3, 8)); E(cvts(X, 1))
    pr(0); pr2(1)
    E(exps(X, 2, 0, 1))
    n = len(a.lines); q.wait("v2"); q.wait("kt")
    if len(a.lines) == n: a("s_nop 0")
    a(pv(1))
    if do_vnext: q.rd("v1", rd_v(1, vli_next))
    E(exps(X, 2, 1, 4))
    if do_qk:
        a(qk_t(Y))
        if do_k: q.rd("kt", rd_kt(kli))
    E(exps(X, 2, 4, 8)); E(cvts(X, 2))
    pr2(0)
    E(exps(X, 3, 0, 2))
    a(pv(2))
    if do_vnext: q.rd("v2", rd_v(2, vli_next))
    E(exps(X, 3, 2, 8)); E(cvts(X, 3))

def rowmax_to_negm(a, X, run=None):
    t = TMP
    a(f"v_max3_f32 v{t}, v{X}, v{X+1}, v{X+2}")
    for j in range(3, 31, 2): a(f"v_max3_f32 v{t}, v{t}, v{X+j}, v{X+j+1}")
    if run is None: a(f"v_max_f32 v{t}, v{t}, v{X+31}")
    else: a(f"v_max3_f32 v{run}, v{t}, v{X+31}, v{run}")

def cross_half_neg(a, src):
    t = TMP
    a(f"v_mov_b32 v{t+1}, v{src}")
    a(f"v_mov_b32 v{t+2}, v{src}")
    a("s_nop 1")
    a(f"v_permlane32_swap_b32 v{t+1}, v{t+2}")
    a("s_nop 1")
    a(f"v_max_f32 v{t+1}, v{t+1}, v{t+2}")
    for j in range(16): a(f"v_sub_f32 v{NEGM+j}, 0, v{t+1}")

def gen_attn(name="attn_kernel", ts=False):
    a = Asm(); q = LdsQ(a); st = Stamps(a, ts, 32)
    L = lambda s: f"{name}_{s}"
    a(f"""
    s_cmp_ge_u32 s2, 256
    s_cbranch_scc1 {L('exit')}
    """); st(); a(f"""
    s_load_dwordx2 s[8:9], s[0:1], 80
    v_lshrrev_b32 v{TMP}, 6, v0
    v_and_b32 v{TMP+1}, 63, v0
    s_and_b32 s12, s2, 7
    s_lshl_b32 s12, s12, 2
    s_bfe_u32 s13, s2, 0x20003
    v_readfirstlane_b32 s14, v{TMP}
    s_add_u32 s12, s12, s13            ; head
    s_lshr_b32 s13, s2, 5
    s_mov_b32 s20, 0
    s_mov_b32 s10, {WS_USED}
    s_mov_b32 s11, 0x20000
    s_mul_i32 s24, s12, {KV_HEAD}
    s_add_u32 s24, s24, {KV_OFF}
    v_lshlrev_b32 v{LK}, 4, v{TMP+1}          ; lane*16
    s_cmp_lt_u32 s14, 8
    s_cbranch_scc1 {L('compute')}
    s_sub_u32 s17, s14, 8
    s_mul_i32 s17, s17, 5632
    v_add_u32 v1, s17, v{LK}
    s_waitcnt lgkmcnt(0)
    s_add_u32 s4, s8, s24
    s_addc_u32 s5, s9, 0
    s_mov_b32 s6, {KV_HEAD}
    s_mov_b32 s7, 0x20000
    """)
    a.label(L('lrestart'))
    a("s_mov_b32 s15, 0\ns_mov_b32 s16, 0")
    for _ in range(3): dma_chunk(a, 1)
    a("s_mov_b32 s19, 7\ns_waitcnt vmcnt(12)\ns_barrier")
    a.label(L('lloop'))
    a("s_waitcnt vmcnt(6)" + ("" if "nobar" in OPT else "\ns_barrier"))
    dma_chunk(a, 1)
    a(f"""
    s_sub_u32 s19, s19, 1
    s_cmp_lg_u32 s19, 0
    s_cbranch_scc1 {L('lloop')}
    s_cmp_lg_u32 s20, 0
    s_cbranch_scc1 {L('end')}
    v_mov_b32 v2, {FLAG_LDS}
    s_barrier
    ds_read_b32 v2, v2
    s_waitcnt lgkmcnt(0)
    v_readfirstlane_b32 s24, v2
    s_nop 1
    s_cmp_eq_u32 s24, 0
    s_cbranch_scc1 {L('end')}
    s_mov_b32 s20, 1
    s_mov_b32 s15, 0
    s_mov_b32 s19, 8
    s_waitcnt vmcnt(0)
    """)
    a.label(L('lmax'))
    a("s_barrier\ns_mov_b32 s16, 0")
    dma_chunk(a, 1)
    a(f"s_waitcnt vmcnt(0)\ns_barrier\ns_sub_u32 s19, s19, 1\ns_cmp_lg_u32 s19, 0\ns_cbranch_scc1 {L('lmax')}\ns_barrier\ns_branch {L('lrestart')}")
    a.label(L('compute'))
    a(f"""
    v_lshlrev_b32 v{LKT}, 3, v{TMP+1}
    v_add_u32 v{LKT}, 8192, v{LKT}
    v_lshrrev_b32 v{TMP+2}, 5, v{TMP+1}       ; h
    v_bfe_u32 v{TMP+3}, v{TMP+1}, 2, 2        ; r
    v_lshl_add_u32 v{TMP+2}, v{TMP+2}, 2, v{TMP+3}
    v_mul_u32_u24 v{TMP+2}, 48, v{TMP+2}
    v_and_b32 v{TMP+3}, 3, v{TMP+1}           ; c
    v_and_b32 v{TMP+4}, 1, v{TMP+3}
    v_lshlrev_b32 v{TMP+4}, 4, v{TMP+4}       ; (c&1)*16
    v_lshrrev_b32 v{TMP+5}, 1, v{TMP+3}
    v_lshl_add_u32 v{TMP+4}, v{TMP+5}, 3, v{TMP+4}
    v_min_u32 v{TMP+5}, 1, v{TMP+3}
    v_lshl_add_u32 v{TMP+5}, v{TMP+5}, 3, 32
    v_and_b32 v{TMP+3}, 16, v{TMP+1}
    v_cmp_eq_u32 vcc, 0, v{TMP+3}
    s_lshl_b32 s25, s13, 3
    s_add_u32 s25, s25, s14
    v_cndmask_b32 v{TMP+4}, v{TMP+5}, v{TMP+4}, vcc
    v_add3_u32 v{LV}, v{TMP+2}, v{TMP+4}, 0
    v_add_u32 v{LV}, 10240, v{LV}
    ; Q offsets
    s_lshl_b32 s26, s12, 6
    s_add_u32 s26, s26, s25
    s_lshl_b32 s27, s26, 10            ; (head*64+blk)*1024
    s_add_u32 s27, s27, {QM_OFF}
    s_lshl_b32 s28, s26, 8             ; (head*64+blk)*256
    s_add_u32 s28, s28, {QT_OFF}
    v_and_b32 v{TMP+2}, 31, v{TMP+1}
    v_lshlrev_b32 v{TMP+3}, 3, v{TMP+2}       ; (lane&31)*8
    ; O offsets
    s_mul_i32 s29, s25, 40960
    s_add_u32 s29, s29, {O_OFF}
    s_lshl_b32 s30, s12, 10
    s_add_u32 s30, s30, s29
    v_add_u32 v{OOFF}, s30, v{LK}
    s_lshr_b32 s30, s12, 2
    s_add_u32 s30, s30, 32
    s_lshl_b32 s30, s30, 10
    s_add_u32 s30, s30, s29
    s_bfe_u32 s31, s12, 0x10001
    s_lshl_b32 s31, s31, 9
    s_add_u32 s30, s30, s31
    s_and_b32 s31, s12, 1
    s_lshl_b32 s31, s31, 3
    s_add_u32 s30, s30, s31
    v_lshlrev_b32 v{OTOFF}, 4, v{TMP+2}
    v_add_u32 v{OTOFF}, s30, v{OTOFF}
    v_mov_b32 v{TMP+4}, {FLAG_LDS}
    v_mov_b32 v{TMP+5}, 0
    ds_write_b32 v{TMP+4}, v{TMP+5}
    s_waitcnt lgkmcnt(0)
    buffer_load_dwordx4 {vr(QM,4)}, v{LK}, s[8:11], s27 offen
    buffer_load_dwordx2 {vr(QT,2)}, v{TMP+3}, s[8:11], s28 offen
    """)
    a.label(L('restart'))
    a(f"""
    v_mov_b32 v{AK}, v{LK}
    v_mov_b32 v{AKT}, v{LKT}
    v_mov_b32 v{AV}, v{LV}
    """)
    for j in range(16): a(f"v_mov_b32 v{O+j}, 0")
    a("s_waitcnt vmcnt(0)\ns_barrier"); st()
    q.rd("ka", rd_ka(0)); q.rd("kb", rd_kb(0)); q.rd("kt", rd_kt(0))
    for g in range(4): q.rd(f"v{g}", rd_v(g, 0))
    a(f"s_cmp_lg_u32 s20, 0\ns_cbranch_scc1 {L('havem')}")
    a("s_waitcnt lgkmcnt(8)")
    a(qk_a(SX, "0")); a(qk_b(SX, "0")); a("s_nop 9"); a(qk_t(SX)); a("s_nop 15\ns_nop 3")
    rowmax_to_negm(a, SX); cross_half_neg(a, TMP)
    a.label(L('havem'))
    q.wait("kt"); a("s_nop 0")
    a(qk_a(SX)); q.rd("ka", rd_ka(1)); a(qk_b(SX)); q.rd("kb", rd_kb(1)); a("s_nop 8"); a(qk_t(SX)); q.rd("kt", rd_kt(1))
    a(f"s_mov_b32 s18, {CHUNK}\ns_mov_b32 s19, 7\ns_nop 15\ns_nop 0")
    if "nords" in OPT: a("s_waitcnt lgkmcnt(0)"); q.q = []; q.on = True
    if "prio" in OPT: a(f"s_cmp_lt_u32 s14, 4\ns_cbranch_scc1 {L('noprio')}\ns_setprio 1"); a.label(L('noprio'))
    iteration(a, q, 0, 2, None, 1, first=True, prio=1)
    iteration(a, q, 1, 3, 1, 2, prio=0)
    state = list(q.q); st(); a("s_waitcnt lgkmcnt(0)" if ts else "")
    for rep in range(7 if ts == 2 else 1):
        if ts != 2: a.label(L('loop'))
        if "nobar" not in OPT: a("s_barrier")
        a(f"v_add_u32 v{AK}, s18, v{LK}\nv_add_u32 v{AKT}, s18, v{LKT}")
        iteration(a, q, 0, 0, 2, 3, prio=3)
        iteration(a, q, 1, 1, 3, 0, v_switch=f"v_add_u32 v{AV}, s18, v{LV}", prio=2)
        a(f"s_add_u32 s18, s18, {CHUNK}\ns_cmp_eq_u32 s18, {NSLOT*CHUNK}\ns_cselect_b32 s18, 0, s18")
        iteration(a, q, 0, 2, 0, 1, prio=1)
        iteration(a, q, 1, 3, 1, 2, prio=0)
        assert q.q == state, (q.q, state)
        if ts == 2: st(); a("s_waitcnt lgkmcnt(0)")
        else: a(f"s_sub_u32 s19, s19, 1\ns_cmp_lg_u32 s19, 0\ns_cbranch_scc1 {L('loop')}")
    iteration(a, q, 0, None, 2, 3, do_k=False, prio=3)
    iteration(a, q, 1, None, 3, None, do_qk=False, do_vnext=False, prio=2)
    q.wait("v3"); a("s_nop 1"); a(pv(3)); st()
    a("s_nop 11")
    t = TMP
    a(f"v_rcp_f32 v{t}, v{O+12}")
    a(f"v_mul_f32 v{t+1}, 0, v{O}")
    for j in range(1, 12): a(f"v_fmac_f32 v{t+1}, 0, v{O+j}")
    a(f"s_mov_b32 s24, 0x7b800000        ; 2^120")
    a(f"v_add_f32 v{t+1}, v{t+1}, v{O+12}")
    for j in range(12): a(f"v_mul_f32 v{O+j}, v{O+j}, v{t}")
    a(f"v_cmp_gt_f32 vcc, s24, v{t+1}")
    for j in range(6): a(f"v_cvt_pk_bf16_f32 v{SX+j}, v{O+2*j}, v{O+2*j+1}")
    a(f"""
    s_mov_b64 s[24:25], vcc
    buffer_store_dwordx4 {vr(SX,4)}, v{OOFF}, s[8:11], 0 offen
    s_mov_b32 exec_hi, 0
    buffer_store_dwordx2 {vr(SX+4,2)}, v{OTOFF}, s[8:11], 0 offen
    s_mov_b64 exec, -1
    s_cmp_lg_u32 s20, 0
    s_cbranch_scc1 {L('end')}
    v_mov_b32 v{t+4}, {FLAG_LDS}
    s_cmp_eq_u64 s[24:25], -1
    s_cbranch_scc1 {L('vote')}
    v_mov_b32 v{t+5}, 1
    ds_write_b32 v{t+4}, v{t+5}
    """)
    a.label(L('vote'))
    a(f"""
    s_waitcnt lgkmcnt(0)
    s_barrier
    ds_read_b32 v{t+5}, v{t+4}
    s_waitcnt lgkmcnt(0)
    v_readfirstlane_b32 s24, v{t+5}
    s_nop 1
    s_cmp_eq_u32 s24, 0
    s_cbranch_scc1 {L('end')}
    s_mov_b32 s20, 1
    s_mov_b32 s15, 0
    s_mov_b32 s19, 8
    v_mov_b32 v{t+3}, 0xff800000
    v_mov_b32 v{AK}, v{LK}
    v_mov_b32 v{AKT}, v{LKT}
    s_waitcnt vmcnt(0)
    """)
    a.label(L('maxloop'))
    a("s_barrier\ns_barrier")
    for li in range(4):
        a(rd_ka(li)); a(rd_kb(li)); a(rd_kt(li)); a("s_waitcnt lgkmcnt(0)")
        a(qk_a(SX, "0")); a(qk_b(SX, "0")); a("s_nop 9"); a(qk_t(SX)); a("s_nop 15\ns_nop 3")
        rowmax_to_negm(a, SX, run=t+3)
    a(f"s_sub_u32 s19, s19, 1\ns_cmp_lg_u32 s19, 0\ns_cbranch_scc1 {L('maxloop')}")
    cross_half_neg(a, t+3)
    a(f"s_barrier\ns_branch {L('restart')}")
    a.label(L('end'))
    st(); st.dump(14, 12, 0)
    a.label(L('exit'))
    a("s_endpgm")
    return a

if __name__ == "__main__":
    import sys
    for spec in sys.argv[1:] or ["base"]:
        OPT.clear(); OPT.update(spec.split("+"))
        for ts in (0, 1):
            a = gen_attn(ts=ts)
            n = check(a.lines)
            if n: print("hazards:", n)
            open("attn3_%s%s.s" % (spec, "_ts%d" % ts if ts else ""), "w").write(module([("attn_kernel", a.text(), NV, 256, 768, LDS_BYTES)]))
```

```python
from asm import *
from layout import *
def vr(a, n): return f"v[{a}:{a+n-1}]"
ACCB, ACCA = 0, 20
AF = (40, 60)
HB = (80, 112)
VG = 160
A1, A2 = 161, 162
LA1, LA2 = 163, 164
VH = 165
VKV = 166
VD = 144
FT = 154
FNV = 168
STEP = 5120

def tile_coords(a, sR, sC):
    a(f"""
    s_and_b32 s{sR}, s2, 3
    s_lshl_b32 s{sR}, s{sR}, 3
    s_bfe_u32 s{sC}, s2, 0x30003
    s_add_u32 s{sR}, s{sR}, s{sC}
    s_bfe_u32 s{sC}, s2, 0x10002
    s_lshl_b32 s{sC}, s{sC}, 2
    s_lshr_b32 s3, s2, 6
    s_add_u32 s{sC}, s{sC}, s3
    """)

def lane_setup(a, lane, sf, wbase):
    t = FT
    a(f"""
    v_lshrrev_b32 v{t}, 4, v{lane}            ; G
    v_bfe_u32 v{t+1}, v{lane}, 2, 2           ; r
    v_and_b32 v{t+2}, 3, v{lane}              ; c
    v_and_b32 v{t+3}, 1, v{t}
    v_lshl_add_u32 v{t+1}, v{t+3}, 2, v{t+1}
    v_lshl_add_u32 v{t+1}, v{t}, 3, v{t+1}
    v_mul_u32_u24 v{t+2}, 40, v{t+2}
    v_add_u32 v{t+2}, {wbase}, v{t+2}
    v_mad_u32_u24 v{LA1}, v{t+1}, s94, v{t+2}
    v_xor_b32 v{t+1}, 4, v{t+1}
    v_mad_u32_u24 v{LA2}, v{t+1}, s94, v{t+2}
    v_lshlrev_b32 v{t}, 9, v{t}
    v_and_b32 v{t+1}, 15, v{lane}
    v_lshl_add_u32 v{VH}, v{t+1}, 4, v{t}
    s_and_b32 s3, s{sf}, 1
    s_lshl_b32 s3, s3, 8
    v_add_u32 v{VH}, s3, v{VH}
    """)

def dma_offsets(a, lane, dst, kind, sC):
    t = FT
    a(f"s_mov_b32 s3, 0x1999999a\ns_mul_i32 s95, s{sC}, 160")
    for j in range(5):
        a(f"""
        v_add_u32 v{t}, {64*j}, v{lane}
        v_mul_hi_u32 v{t+1}, v{t}, s3
        v_mul_u32_u24 v{t+2}, 10, v{t+1}
        v_sub_u32 v{t}, v{t}, v{t+2}              ; piece
        v_lshrrev_b32 v{t+2}, 1, v{t+1}
        v_and_b32 v{t+2}, 4, v{t+2}
        v_xor_b32 v{t+1}, v{t+1}, v{t+2}
        """)
        if kind == "main":
            a(f"v_lshrrev_b32 v{t+2}, 4, v{t+1}\nv_lshl_add_u32 v{t+1}, v{t+2}, 3, v{t+1}")
        if kind == "tail":
            a(f"v_lshrrev_b32 v{t+2}, 3, v{t+1}\nv_lshl_add_u32 v{t+1}, v{t+2}, 5, v{t+1}\nv_add_u32 v{t+1}, 16, v{t+1}")
        a(f"""
        v_mul_u32_u24 v{t+1}, 1280, v{t+1}
        v_lshl_add_u32 v{t}, v{t}, 4, v{t+1}
        v_add_u32 v{dst+j}, s95, v{t}
        """)

def dma_step(a, voff, srd, lds_sgpr_expr, soff):
    s, c = lds_sgpr_expr
    for j in range(5):
        a(f"s_add_u32 m0, s{s}, {c+1024*j}\ns_nop 0\nbuffer_load_dwordx4 v{voff+j}, s[{srd}:{srd+3}], s{soff} offen lds")

def rd_a(buf, u, off):
    return [f"ds_read_b64_tr_b16 {vr(AF[buf]+4*u,2)}, v{A1} offset:{off+8*u}",
            f"ds_read_b64_tr_b16 {vr(AF[buf]+4*u+2,2)}, v{A2} offset:{off+8*u}"]

def gemm_steps(a, acc, bregs, offs, pre=None):
    n = len(bregs)
    def reads(i):
        o = offs[i]() if callable(offs[i]) else offs[i]
        return [rd_a(i & 1, u, o) for u in range(5)]
    for r in reads(0):
        for t in r: a(t)
    for i in range(n):
        a("s_waitcnt lgkmcnt(0)")
        if pre and pre.get(i): a(pre[i])
        nxt = reads(i+1) if i+1 < n else None
        for u in range(5):
            a(f"v_mfma_f32_16x16x32_bf16 {vr(acc+4*u,4)}, {vr(AF[i&1]+4*u,4)}, {vr(bregs[i],4)}, {vr(acc+4*u,4)}")
            if nxt:
                for t in nxt[u]: a(t)

def gate_loads(a, lane, srd_x, srd_g, sTok):
    pass

def gate(a, lane, srd_x, srd_g, sTok):
    t = FT
    a(f"""
    v_and_b32 v{t}, 15, v{lane}
    v_lshrrev_b32 v{t+1}, 4, v{lane}
    v_lshlrev_b32 v{t+1}, 4, v{t+1}           ; G*16
    v_mul_u32_u24 v{t}, 1280, v{t}
    v_add_u32 v{t}, v{t}, v{t+1}
    s_mul_i32 s3, s{sTok}, 1280
    v_mov_b32 v{ACCA}, 0
    v_mov_b32 v{ACCA+1}, 0
    v_mov_b32 v{ACCA+2}, 0
    v_mov_b32 v{ACCA+3}, 0
    """)
    for half in range(2):
        for i in range(10):
            s = 10*half + i
            a(f"buffer_load_dwordx4 {vr(40+4*i,4)}, v{t+1}, s[{srd_g}:{srd_g+3}], 0 offen offset:{64*s}")
            a(f"buffer_load_dwordx4 {vr(80+4*i,4)}, v{t}, s[{srd_x}:{srd_x+3}], s3 offen offset:{64*s}")
        a("s_waitcnt vmcnt(0)")
        for i in range(10):
            a(f"v_mfma_f32_16x16x32_bf16 {vr(ACCA,4)}, {vr(40+4*i,4)}, {vr(80+4*i,4)}, {vr(ACCA,4)}")
    a(f"""
    s_nop 7
    v_mul_f32 v{t}, 0xbfb8aa3b, v{ACCA}
    v_exp_f32 v{t}, v{t}
    s_nop 0
    v_add_f32 v{t}, 1.0, v{t}
    v_rcp_f32 v{VG}, v{t}
    s_nop 0
    """)

def final_store(a, lane, srd_out, sTok, sC):
    t = FT
    a(f"""
    v_and_b32 v{t}, 15, v{lane}
    v_lshrrev_b32 v{t+1}, 4, v{lane}
    v_mul_u32_u24 v{t}, 1280, v{t}
    v_mad_u32_u24 v{t}, v{t+1}, 40, v{t}
    s_mul_i32 s3, s{sTok}, 1280
    s_mul_i32 s95, s{sC}, 160
    s_add_u32 s3, s3, s95
    """)
    for r in range(20): a(f"v_fma_f32 v{ACCA+r}, v{ACCA+r}, v{VG}, v{ACCB+r}")
    for r in range(10): a(f"v_cvt_pk_bf16_f32 v{AF[0]+r}, v{ACCA+2*r}, v{ACCA+2*r+1}")
    a(f"""
    buffer_store_dwordx4 {vr(AF[0],4)}, v{t}, s[{srd_out}:{srd_out+3}], s3 offen
    buffer_store_dwordx4 {vr(AF[0]+4,4)}, v{t}, s[{srd_out}:{srd_out+3}], s3 offen offset:16
    buffer_store_dwordx2 {vr(AF[0]+8,2)}, v{t}, s[{srd_out}:{srd_out+3}], s3 offen offset:32
    """)
```

```python
from asm import *
from layout import *
from attn3 import LdsQ, vr
import struct
OPT = set()
SLOT = 32768
NSL = 4
def fbits(x): return "0x%08x" % struct.unpack("<I", struct.pack("<f", x))[0]

ACC = (0, 16)
XF = (32, 36)
WF = ((40, 44), (48, 52))
AX = 56
AW = 60
LX, LW = 62, 63
T = 66
BIAS = 90
LANE16, VADDRV = 106, 107
NV = 108
SC = " sc1"

def loader_setup(a):
    a("""
    s_sub_u32 s15, s14, 8
    v_and_b32 v1, 63, v0
    v_lshrrev_b32 v2, 3, v1               ; l>>3
    v_lshrrev_b32 v3, 4, v1               ; l>>4
    v_and_b32 v4, 7, v1
    s_lshl_b32 s16, s15, 5
    v_add_u32 v2, s16, v2                 ; token (j=0)
    v_mul_u32_u24 v2, 1280, v2
    v_xor_b32 v5, v4, v3
    v_lshl_add_u32 v10, v5, 4, v2         ; VX0
    v_xor_b32 v5, 4, v5
    v_lshl_add_u32 v11, v5, 4, v2
    v_add_u32 v11, 9216, v11              ; VX1 : + 8*1280 - 1024
    v_add_u32 v12, 18432, v10             ; VX2
    v_add_u32 v13, 18432, v11             ; VX3
    v_bfe_u32 v4, v1, 2, 2                ; g'
    v_xor_b32 v4, v4, v3                  ; g = g' ^ r
    v_and_b32 v5, 3, v1                   ; i
    v_lshlrev_b32 v6, 4, v5               ; i*16
    v_lshrrev_b32 v7, 1, v5
    v_lshl_add_u32 v6, v7, 4, v6          ; {0,16,48,64}
    v_mul_u32_u24 v7, 80, v4
    v_add_u32 v6, v6, v7
    v_min_u32 v7, 2, v5
    v_mul_u32_u24 v7, 80, v7
    v_add_u32 v7, 32, v7                  ; tail: i*80 + 32
    v_cmp_eq_u32 vcc, 3, v4
    s_lshl_b32 s16, s15, 4
    v_add_u32 v8, s16, v3                 ; row
    v_cndmask_b32 v6, v6, v7, vcc
    v_mul_u32_u24 v8, 3840, v8
    s_mul_i32 s17, s13, 240
    v_add3_u32 v14, v8, v6, s17           ; VW0
    v_add_u32 v15, 14336, v14             ; + 4*3840 - 1024
    v_add_u32 v16, 14336, v15
    v_add_u32 v17, 14336, v16
    s_mul_i32 s17, s13, 192
    s_mul_i32 s16, s15, 49152             ; 16 rows * 3072
    s_add_u32 s17, s17, s16
    s_mov_b32 s16, 0x15555556
    """)
    for j in range(3):
        a(f"""
        v_add_u32 v2, {64*j}, v1
        v_mul_hi_u32 v3, v2, s16              ; idx/12
        v_mul_u32_u24 v4, 12, v3
        v_sub_u32 v2, v2, v4                  ; idx%12
        v_mul_u32_u24 v3, 3072, v3
        v_lshl_add_u32 v2, v2, 4, v3
        v_add_u32 v{18+j}, s17, v2
        """)
        if j: a(f"v_subrev_u32 v{18+j}, {1024*j}, v{18+j}")

def loader_stage(a, n):
    slot = (n % NSL) * SLOT
    k0 = (n % 10) * 64
    a(f"s_add_u32 m0, s18, {slot}\ns_mov_b32 s20, {k0*2}")
    for j in range(4): a(f"buffer_load_dwordx4 v{10+j}, s[4:7], s20 offen offset:{1024*j} lds")
    if n < 10:
        a(f"s_add_u32 m0, s18, {slot+16384}\ns_mov_b32 s20, {k0*3840}")
        for j in range(4): a(f"buffer_load_dwordx4 v{14+j}, s[8:11], s20 offen offset:{1024*j} lds")
    else:
        a(f"s_add_u32 m0, s19, {slot+16384}\ns_mov_b32 s20, {k0*3072}")
        for j in range(3): a(f"buffer_load_dwordx4 v{18+j}, s[24:27], s20 offen offset:{1024*j} lds")
cnt = lambda n: 0 if n >= 20 else (8 if n < 10 else 7)

def loader(a, st):
    loader_setup(a)
    a("""
    s_lshl_b32 s18, s15, 12
    s_mul_i32 s19, s15, 3072
    s_mul_i32 s16, s12, 163840
    s_mov_b32 s6, 163840
    s_mov_b32 s7, 0x20000
    s_mov_b32 s10, 2457600
    s_mov_b32 s11, 0x20000
    s_mov_b32 s26, 1966080
    s_mov_b32 s27, 0x20000
    s_waitcnt lgkmcnt(0)
    s_add_u32 s4, s4, s16
    s_addc_u32 s5, s5, 0
    """)
    for n in range(NSL): loader_stage(a, n)
    for n in range(20):
        a(f"s_waitcnt vmcnt({cnt(n+1)+cnt(n+2) + (cnt(3) if n == 0 else 0)})\ns_barrier")
        if st.on == 2 and n in (0,1,2,3,4,5,7,9,10,12,15,19): st()
        if n >= 1 and n+3 < 20: loader_stage(a, n+3)

def rd_step(q, buf, s, ntile, stride):
    L = [("x", f"ds_read_b128 {vr(XF[buf],4)}, v{AX+s}")]
    for t in range(ntile):
        o = 16*s*stride + (64*t if stride == 192 and t else 0)
        ad = AW + (t if stride == 256 else 0)
        L.append(("w", f"ds_read_b64_tr_b16 {vr(WF[buf][t],2)}, v{ad} offset:{o}"))
        L.append(("w", f"ds_read_b64_tr_b16 {vr(WF[buf][t]+2,2)}, v{ad} offset:{o+4*stride}"))
    return L
def mm(buf, t): return f"v_mfma_f32_32x32x16_bf16 {vr(ACC[t],16)}, {vr(WF[buf][t],4)}, {vr(XF[buf],4)}, {vr(ACC[t],16)}"
def set_addr(a, ntile, stride):
    a(f"v_add_u32 v{AX}, s18, v{LX}\nv_add_u32 v{AW}, s18, v{LW}")
    if stride == 256: a(f"v_add_u32 v{AW+1}, s18, v{LW+1}")
    a(f"v_xor_b32 v{AX+1}, 32, v{AX}\nv_xor_b32 v{AX+2}, 64, v{AX}\nv_xor_b32 v{AX+3}, 0x60, v{AX}")
    a(f"s_add_u32 s18, s18, {SLOT}\ns_and_b32 s18, s18, {NSL*SLOT-1}")

def kloop(a, L, tag, ntile, stride, first_barrier, mid=None):
    if first_barrier: a("s_barrier")
    set_addr(a, ntile, stride)
    for tg, t in rd_step(None, 0, 0, ntile, stride): a(t)
    a("s_mov_b32 s19, 10")
    a.label(L(tag))
    for s in range(4):
        buf = s & 1
        a("s_waitcnt lgkmcnt(0)")
        if s == 3:
            a(f"s_sub_u32 s19, s19, 1\ns_cmp_eq_u32 s19, 0\ns_cbranch_scc1 {L(tag+'_last')}")
            if mid: mid()
            a("s_barrier")
            set_addr(a, ntile, stride)
        rd = [t for _, t in rd_step(None, buf ^ 1, (s+1) & 3, ntile, stride)]
        a(mm(buf, 0))
        if ntile == 2:
            for t in rd[:3]: a(t)
            a(mm(buf, 1))
            for t in rd[3:]: a(t)
        else:
            for t in rd: a(t)
    a(f"s_branch {L(tag)}")
    a.label(L(tag+'_last'))
    for t in range(ntile): a(mm(1, t))

def pack16(a, src, dst, scale=None, n=16):
    for r in range(0, n, 2):
        if scale: a(f"v_mul_f32 v{src+r}, {scale}, v{src+r}\nv_mul_f32 v{src+r+1}, {scale}, v{src+r+1}")
    for r in range(0, n, 2): a(f"v_cvt_pk_bf16_f32 v{dst+r//2}, v{src+r}, v{src+r+1}")

def pair_info(a, poff):
    a(f"""
    s_mul_i32 s20, s13, 3
    s_add_u32 s20, s20, {poff}
    s_and_b32 s21, s20, 15
    s_lshr_b32 s20, s20, 4
    s_lshl_b32 s21, s21, 1               ; head A
    """)

def main_tile_store(a, L, tag, t, poff):
    acc = ACC[t]; d = T + 8*t
    pair_info(a, poff)
    a(f"s_cmp_lg_u32 s20, 0\ns_cbranch_scc1 {L(tag+'kv')}")
    pack16(a, acc, d, "s30")
    a(f"""
    s_lshl_b32 s21, s21, 16
    s_add_u32 s21, s21, s28
    s_add_u32 s22, s21, 65536
    buffer_store_dwordx4 {vr(d,4)}, v{LANE16}, s[4:7], s21 offen{SC}
    buffer_store_dwordx4 {vr(d+4,4)}, v{LANE16}, s[4:7], s22 offen{SC}
    s_branch {L(tag+'done')}
    """)
    a.label(L(tag+'kv'))
    pack16(a, acc, d)
    a(f"""
    s_mul_i32 s21, s21, {KV_HEAD}
    s_add_u32 s21, s21, s29
    s_cmp_lg_u32 s20, 1
    s_cbranch_scc1 {L(tag+'v')}
    s_add_u32 s21, s21, s31
    s_add_u32 s22, s21, {KV_HEAD}
    buffer_store_dwordx4 {vr(d,4)}, v{LANE16}, s[4:7], s21 offen{SC}
    buffer_store_dwordx4 {vr(d+4,4)}, v{LANE16}, s[4:7], s22 offen{SC}
    s_branch {L(tag+'done')}
    """)
    a.label(L(tag+'v'))
    a(f"""
    s_add_u32 s21, s21, s32
    s_add_u32 s22, s21, {KV_HEAD}
    buffer_store_dwordx4 {vr(d,4)}, v{VADDRV}, s[4:7], s21 offen{SC}
    buffer_store_dwordx4 {vr(d+4,4)}, v{VADDRV}, s[4:7], s22 offen{SC}
    """)
    a.label(L(tag+'done'))

def tail_tile_store(a, L):
    acc = ACC[1]
    a(f"""
    v_lshrrev_b32 v{T+20}, 4, v{LANE16}
    v_and_b32 v{T+16}, 31, v{T+20}
    v_lshrrev_b32 v{T+20}, 5, v{T+20}
    v_mul_u32_u24 v{T+19}, 48, v{T+16}
    v_lshlrev_b32 v{T+16}, 3, v{T+16}
    v_lshl_add_u32 v{T+17}, v{T+20}, 14, v{T+16}
    v_mul_u32_u24 v{T+20}, {KV_HEAD}, v{T+20}
    v_add_u32 v{T+18}, v{T+20}, v{T+16}
    v_add3_u32 v{T+19}, v{T+19}, v{T+20}, 32
    """)
    for j in range(3):
        tag = f"tt{j}"; d = T + 8 + (j & 1)*4 if False else T + 22 + 0
        d = (T+8, T+12, ACC[1]+12)[j]
        pair_info(a, j)
        a(f"s_cmp_lg_u32 s20, 0\ns_cbranch_scc1 {L(tag+'kv')}")
        pack16(a, acc+4*j, d, "s30", n=4)
        a(f"""
        s_lshl_b32 s21, s21, 14
        s_add_u32 s21, s21, s33
        buffer_store_dwordx2 {vr(d,2)}, v{T+17}, s[4:7], s21 offen{SC}
        s_branch {L(tag+'done')}
        """)
        a.label(L(tag+'kv'))
        pack16(a, acc+4*j, d, n=4)
        a(f"""
        s_mul_i32 s21, s21, {KV_HEAD}
        s_add_u32 s21, s21, s29
        s_cmp_lg_u32 s20, 1
        s_cbranch_scc1 {L(tag+'v')}
        s_add_u32 s21, s21, s34
        buffer_store_dwordx2 {vr(d,2)}, v{T+18}, s[4:7], s21 offen{SC}
        s_branch {L(tag+'done')}
        """)
        a.label(L(tag+'v'))
        a(f"""
        v_mov_b32 v{d+2}, 0x3f80
        v_mov_b32 v{d+3}, 0
        s_add_u32 s21, s21, s32
        buffer_store_dwordx4 {vr(d,4)}, v{T+19}, s[4:7], s21 offen{SC}
        """)
        a.label(L(tag+'done'))

def mish(a, acc, d):
    LOG2E = fbits(1.4426950408889634)
    for b in range(0, 16, 8):
        R = range(b, b+8); tt = lambda r: T + 8 + (r & 7); uu = lambda r: T + 16 + (r & 7)
        for r in R: a(f"v_mul_f32 v{tt(r)}, {LOG2E}, v{acc+r}")
        for r in R: a(f"v_min_f32 v{tt(r)}, s35, v{tt(r)}")
        for r in R: a(f"v_exp_f32 v{tt(r)}, v{tt(r)}")
        for r in R: a(f"v_add_f32 v{uu(r)}, 2.0, v{tt(r)}")
        for r in R: a(f"v_mul_f32 v{tt(r)}, v{tt(r)}, v{uu(r)}")
        for r in R: a(f"v_add_f32 v{uu(r)}, 2.0, v{tt(r)}")
        for r in R: a(f"v_rcp_f32 v{uu(r)}, v{uu(r)}")
        for r in R: a(f"v_mul_f32 v{tt(r)}, v{tt(r)}, v{acc+r}")
        for r in R: a(f"v_mul_f32 v{tt(r)}, v{tt(r)}, v{uu(r)}")
        for r in range(b, b+8, 2): a(f"v_cvt_pk_bf16_f32 v{d+r//2}, v{tt(r)}, v{tt(r+1)}")

def bias_init(a, t):
    for r in range(8):
        a(f"v_lshlrev_b32 v{ACC[t]+2*r}, 16, v{BIAS+8*t+r}\nv_and_b32 v{ACC[t]+2*r+1}, 0xffff0000, v{BIAS+8*t+r}")

def gen_k1(name="k1_kernel", ts=False):
    a = Asm(); st = Stamps(a, ts, 40)
    L = lambda s: f"{name}_{s}"
    a(f"s_cmp_ge_u32 s2, 256\ns_cbranch_scc1 {L('exit')}")
    st()
    a(f"""
    v_lshrrev_b32 v1, 6, v0
    s_and_b32 s12, s2, 1
    s_lshl_b32 s12, s12, 3
    s_bfe_u32 s13, s2, 0x30003
    v_readfirstlane_b32 s14, v1
    s_add_u32 s12, s12, s13               ; rb
    s_bfe_u32 s13, s2, 0x20001
    s_lshl_b32 s13, s13, 2
    s_lshr_b32 s15, s2, 6
    s_add_u32 s13, s13, s15               ; grp
    s_cmp_lt_u32 s14, 8
    s_cbranch_scc1 {L('compute')}
    s_load_dwordx2 s[4:5], s[0:1], 0
    s_load_dwordx2 s[8:9], s[0:1], 8
    s_load_dwordx2 s[24:25], s[0:1], 32
    """)
    loader(a, st)
    if ts == 2:
        st(); st.dump(14, 12, 0, slot=1); st.on = False
    a(f"s_branch {L('end')}")
    a.label(L('compute'))
    a(f"""
    s_load_dwordx2 s[4:5], s[0:1], 80
    s_load_dwordx2 s[8:9], s[0:1], 40
    s_and_b32 s15, s14, 3                 ; tb
    s_lshr_b32 s16, s14, 2                ; 0 / 1
    v_and_b32 v{T}, 63, v0                ; lane
    v_and_b32 v{T+1}, 31, v{T}            ; t
    v_lshrrev_b32 v{T+2}, 5, v{T}         ; h
    v_lshlrev_b32 v{LANE16}, 4, v{T}
    v_mul_u32_u24 v{VADDRV}, 48, v{T+1}
    v_lshl_add_u32 v{VADDRV}, v{T+2}, 4, v{VADDRV}
    v_bfe_u32 v{T+3}, v{T+1}, 1, 3
    v_xor_b32 v{T+3}, v{T+3}, v{T+2}
    v_lshlrev_b32 v{T+3}, 4, v{T+3}
    v_lshl_add_u32 v{LX}, v{T+1}, 7, v{T+3}
    s_lshl_b32 s17, s15, 12
    v_add_u32 v{LX}, s17, v{LX}
    v_bfe_u32 v{T+3}, v{T}, 2, 2          ; r
    v_lshl_add_u32 v{T+4}, v{T+2}, 3, v{T+3}      ; krow = 8h + r
    v_bfe_u32 v{T+5}, v{T}, 4, 1
    v_and_b32 v{T+6}, 3, v{T}             ; c
    v_and_b32 v{T+7}, 1, v{T}
    v_lshlrev_b32 v{T+7}, 1, v{T+7}
    v_bfe_u32 v{T+8}, v{T}, 1, 1
    v_add_u32 v{T+7}, v{T+7}, v{T+8}      ; perm[c]
    v_lshlrev_b32 v{T+5}, 5, v{T+5}
    v_lshl_add_u32 v{T+7}, v{T+7}, 3, v{T+5}
    v_lshl_add_u32 v{T+6}, v{T+6}, 3, v{T+5}      ; half*32 + c*8
    v_lshlrev_b32 v{T+8}, 8, v{T+4}
    v_add_u32 v{T+8}, 16384, v{T+8}
    s_lshl_b32 s17, s16, 1
    v_xor_b32 v{T+9}, s17, v{T+3}
    v_lshl_add_u32 v{LW}, v{T+9}, 6, v{T+8}
    v_xor_b32 v{T+9}, 1, v{T+9}
    v_lshl_add_u32 v{LW+1}, v{T+9}, 6, v{T+8}
    v_add_u32 v{LW}, v{LW}, v{T+7}
    s_cmp_eq_u32 s16, 0
    s_cselect_b64 vcc, -1, 0
    v_mul_u32_u24 v{T+10}, 192, v{T+4}
    v_cndmask_b32 v{T+6}, v{T+6}, v{T+7}, vcc
    v_add_u32 v{LW+1}, v{LW+1}, v{T+6}
    s_lshl_b32 s17, s16, 7
    s_add_u32 s17, s17, 16384
    v_add3_u32 v{LW+2}, v{T+10}, v{T+7}, s17      ; P2 address
    s_lshl_b32 s23, s12, 2
    s_add_u32 s23, s23, s15               ; TB
    s_lshl_b32 s28, s23, 10
    s_add_u32 s28, s28, {QM_OFF}
    s_lshr_b32 s29, s23, 3
    s_mul_i32 s29, s29, {CHUNK}
    s_add_u32 s29, s29, {KV_OFF}
    s_and_b32 s34, s23, 7
    s_lshl_b32 s31, s34, 10
    s_mul_i32 s32, s34, 1536
    s_add_u32 s32, s32, 10240
    s_lshl_b32 s34, s34, 8
    s_add_u32 s34, s34, 8192
    s_lshl_b32 s33, s23, 8
    s_add_u32 s33, s33, {QT_OFF}
    s_mov_b32 s30, {fbits(QSCALE)}
    s_mov_b32 s35, {fbits(40.0)}
    s_mov_b32 s6, {WS_USED}
    s_mov_b32 s7, 0x20000
    s_mov_b32 s10, 3072
    s_mov_b32 s11, 0x20000
    s_mul_i32 s36, s13, 192
    s_lshl_b32 s17, s16, 7
    s_add_u32 s36, s36, s17
    v_lshlrev_b32 v{T+2}, 4, v{T+2}
    s_mov_b32 s18, 0
    s_waitcnt lgkmcnt(0)
    """)
    for u in range(4): a(f"buffer_load_dwordx4 {vr(BIAS+4*u,4)}, v{T+2}, s[8:11], s36 offen offset:{32*u}")
    for r in range(32): a(f"v_mov_b32 v{r}, 0")
    kloop(a, L, "p1", 2, 256, True)
    st()
    a(f"s_nop 7\ns_cmp_lg_u32 s16, 0\ns_cbranch_scc1 {L('hi')}")
    main_tile_store(a, L, "a", 0, 0)
    main_tile_store(a, L, "b", 1, 1)
    a(f"v_mov_b32 v{LW}, v{LW+2}\ns_waitcnt vmcnt(4)")
    bias_init(a, 0); bias_init(a, 1)
    st()
    kloop(a, L, "p2lo", 2, 192, True)
    st()
    a(f"s_mul_i32 s21, s23, 98304\ns_mul_i32 s22, s13, 6144\ns_add_u32 s21, s21, s22\ns_add_u32 s21, s21, {H_OFF}\ns_nop 7")
    for t in range(2):
        mish(a, ACC[t], BIAS+8*t)
        for u in range(2): a(f"buffer_store_dwordx4 {vr(BIAS+8*t+4*u,4)}, v{LANE16}, s[4:7], s21 offen offset:{2048*t+1024*u}{SC}")
    a(f"s_branch {L('end')}")
    a.label(L('hi'))
    main_tile_store(a, L, "c", 0, 2)
    tail_tile_store(a, L)
    a(f"v_mov_b32 v{LW}, v{LW+2}\ns_waitcnt vmcnt(5)")
    bias_init(a, 0)
    st.n -= 2; st()
    kloop(a, L, "p2hi", 1, 192, True)
    st()
    a(f"s_mul_i32 s21, s23, 98304\ns_mul_i32 s22, s13, 6144\ns_add_u32 s21, s21, s22\ns_add_u32 s21, s21, {H_OFF+4096}\ns_nop 7")
    mish(a, ACC[0], BIAS)
    for u in range(2): a(f"buffer_store_dwordx4 {vr(BIAS+4*u,4)}, v{LANE16}, s[4:7], s21 offen offset:{1024*u}{SC}")
    a.label(L('end'))
    if ts: a("s_waitcnt vmcnt(0)")
    st(); st.dump(14, 12, 0, slot=1)
    a.label(L('exit'))
    a("s_endpgm")
    return a

if __name__ == "__main__":
    for ts in (0, 1, 2):
        a = gen_k1(ts=ts)
        n = check(a.lines)
        if n: print("hazards:", n)
        open("k1%s.s" % ("_ts%d" % ts if ts else ""), "w").write(module([("k1_kernel", a.text(), NV, 256, 768, NSL*SLOT)]))
```

```python
from asm import *
from layout import *
import fw

SX, SY, O, NEGM = 0, 32, 64, 80
KA, KB, KT, QM, QT = 96, 100, 104, 106, 110
VF = 112
P = (128, 132)
AK, AKT, AV = 136, 137, 138
LK, LKT, LV = 139, 140, 141
DOFF = 142
TMP = 143
OOFF, OTOFF = 151, 152
NV = 168
NSLOT = 3
OPT = {"desc"}
WBUF = NSLOT*CHUNK
FLAG_LDS = WBUF + 81920
LDS_BYTES = FLAG_LDS + 64

def vr(a, n): return f"v[{a}:{a+n-1}]"

def dma_chunk(a, doff=1):
    a(f"s_add_u32 m0, s16, s17\ns_add_u32 s16, s16, {CHUNK}")
    for j in range(4): a(f"buffer_load_dwordx4 v{doff}, s[4:7], s15 offen offset:{1024*j} lds")
    a(f"s_add_u32 m0, m0, 4096\ns_add_u32 s21, s15, 4096")
    a(f"buffer_load_dwordx4 v{doff}, s[4:7], s21 offen lds")
    a(f"s_mov_b32 exec_hi, 0\nbuffer_load_dwordx4 v{doff}, s[4:7], s21 offen offset:1024 lds\ns_mov_b64 exec, -1")
    a(f"s_add_u32 s15, s15, {CHUNK}\ns_cmp_eq_u32 s16, {NSLOT*CHUNK}\ns_cselect_b32 s16, 0, s16")

def cinit(): return "0" if "czero" in OPT else vr(NEGM,16)
def rd_ka(li): return f"ds_read_b128 {vr(KA,4)}, v{AK} offset:{li*2048}"
def rd_kb(li): return f"ds_read_b128 {vr(KB,4)}, v{AK} offset:{li*2048+1024}"
def rd_kt(li): return f"ds_read_b64 {vr(KT,2)}, v{AKT} offset:{li*512}"
def rd_v(g, li):
    o = (li*64 + g*16)*48
    return [f"ds_read_b64_tr_b16 {vr(VF+4*g,2)}, v{AV} offset:{o}",
            f"ds_read_b64_tr_b16 {vr(VF+4*g+2,2)}, v{AV} offset:{o+8*48}"]
def qk_a(Y, c=None): return f"v_mfma_f32_32x32x16_bf16 {vr(Y,16)}, {vr(KA,4)}, {vr(QM,4)}, {c or cinit()}"
def qk_b(Y, c=None): return f"v_mfma_f32_32x32x16_bf16 {vr(Y+16,16)}, {vr(KB,4)}, {vr(QM,4)}, {c or cinit()}"
def qk_t(Y): return f"v_mfma_f32_32x32x4_2b_bf16 {vr(Y,32)}, {vr(KT,2)}, {vr(QT,2)}, {vr(Y,32)}"
def pv(g): return f"v_mfma_f32_32x32x16_bf16 {vr(O,16)}, {vr(VF+4*g,4)}, {vr(P[g&1],4)}, {vr(O,16)}"
def exps(X, g, lo, hi): return [f"v_exp_f32 v{X+8*g+j}, v{X+8*g+j}" for j in range(lo, hi)]
def cvts(X, g): return [f"v_cvt_pk_bf16_f32 v{P[g&1]+j}, v{X+8*g+2*j}, v{X+8*g+2*j+1}" for j in range(4)]

class LdsQ:
    def __init__(self, a): self.a = a; self.q = []; self.on = False
    def rd(self, tag, ins):
        if "nords" in OPT and self.on: return
        for t in (ins if isinstance(ins, list) else [ins]):
            self.a(t); self.q.append(tag)
    def wait(self, tag):
        if tag not in self.q: return
        last = max(i for i, t in enumerate(self.q) if t == tag)
        n = len(self.q) - 1 - last
        assert n <= 15
        self.a(f"s_waitcnt lgkmcnt({n})")
        self.q = self.q[last+1:]

def iteration(a, q, par, kli, vli_cur, vli_next, first=False, do_qk=True, do_k=True, do_vnext=True, v_switch=None, prio=None):
    X, Y = (SX, SY) if par == 0 else (SY, SX)
    E = lambda l: [a(x) for x in l]
    pr = lambda n: a(f"s_setprio {n}") if "bal" in OPT else None
    pr2 = lambda n: a(f"s_setprio {n}") if "bal2" in OPT else None
    if prio is not None and 'desc' in OPT: a(f's_setprio {prio}')
    pr(1); pr2(1)
    q.wait("v0")
    if do_qk:
        q.wait("kb"); a(qk_a(Y))
        if do_k: q.rd("ka", rd_ka(kli))
    E(exps(X, 0, 0, 3))
    if not first:
        a(pv(3)); q.rd("v3", rd_v(3, vli_cur))
    if v_switch: a(v_switch)
    E(exps(X, 0, 3, 8)); E(cvts(X, 0))
    pr2(0)
    if do_qk:
        a(qk_b(Y))
        if do_k: q.rd("kb", rd_kb(kli))
    E(exps(X, 1, 0, 3))
    a(pv(0))
    if do_vnext: q.rd("v0", rd_v(0, vli_next))
    E(exps(X, 1, 3, 8)); E(cvts(X, 1))
    pr(0); pr2(1)
    E(exps(X, 2, 0, 1))
    n = len(a.lines); q.wait("v2"); q.wait("kt")
    if len(a.lines) == n: a("s_nop 0")
    a(pv(1))
    if do_vnext: q.rd("v1", rd_v(1, vli_next))
    E(exps(X, 2, 1, 4))
    if do_qk:
        a(qk_t(Y))
        if do_k: q.rd("kt", rd_kt(kli))
    E(exps(X, 2, 4, 8)); E(cvts(X, 2))
    pr2(0)
    E(exps(X, 3, 0, 2))
    a(pv(2))
    if do_vnext: q.rd("v2", rd_v(2, vli_next))
    E(exps(X, 3, 2, 8)); E(cvts(X, 3))

def rowmax_to_negm(a, X, run=None):
    t = TMP
    a(f"v_max3_f32 v{t}, v{X}, v{X+1}, v{X+2}")
    for j in range(3, 31, 2): a(f"v_max3_f32 v{t}, v{t}, v{X+j}, v{X+j+1}")
    if run is None: a(f"v_max_f32 v{t}, v{t}, v{X+31}")
    else: a(f"v_max3_f32 v{run}, v{t}, v{X+31}, v{run}")

def cross_half_neg(a, src):
    t = TMP
    a(f"v_mov_b32 v{t+1}, v{src}")
    a(f"v_mov_b32 v{t+2}, v{src}")
    a("s_nop 1")
    a(f"v_permlane32_swap_b32 v{t+1}, v{t+2}")
    a("s_nop 1")
    a(f"v_max_f32 v{t+1}, v{t+1}, v{t+2}")
    for j in range(16): a(f"v_sub_f32 v{NEGM+j}, 0, v{t+1}")

def gen_attn(name="k2_kernel", ts=False):
    a = Asm(); q = LdsQ(a); st = Stamps(a, ts, 48)
    L = lambda s: f"{name}_{s}"
    a(f"""
    s_cmp_ge_u32 s2, 256
    s_cbranch_scc1 {L('exit')}
    """); st(); a(f"""
    s_load_dwordx2 s[8:9], s[0:1], 80
    v_lshrrev_b32 v{TMP}, 6, v0
    v_and_b32 v{TMP+1}, 63, v0
    s_and_b32 s12, s2, 7
    s_lshl_b32 s12, s12, 2
    s_bfe_u32 s13, s2, 0x20003
    v_readfirstlane_b32 s14, v{TMP}
    s_add_u32 s12, s12, s13            ; head
    s_lshr_b32 s13, s2, 5
    s_mov_b32 s20, 0
    s_mov_b32 s10, {WS_USED}
    s_mov_b32 s11, 0x20000
    s_mul_i32 s24, s12, {KV_HEAD}
    s_add_u32 s24, s24, {KV_OFF}
    v_lshlrev_b32 v{LK}, 4, v{TMP+1}          ; lane*16
    s_cmp_lt_u32 s14, 8
    s_cbranch_scc1 {L('compute')}
    s_load_dwordx2 s[36:37], s[0:1], 48
    s_load_dwordx2 s[40:41], s[0:1], 0
    s_load_dwordx2 s[44:45], s[0:1], 56
    s_sub_u32 s14, s14, 8
    s_mul_i32 s17, s14, 5632
    v_add_u32 v{fw.VKV}, s17, v{LK}
    v_mov_b32 v167, v{TMP+1}
    s_mov_b32 s94, 160
    s_waitcnt lgkmcnt(0)
    s_add_u32 s4, s8, s24
    s_addc_u32 s5, s9, 0
    s_mov_b32 s6, {KV_HEAD}
    s_mov_b32 s7, 0x20000
    s_mov_b32 s38, 1966080
    s_mov_b32 s39, 0x20000
    s_mov_b32 s42, 2621440
    s_mov_b32 s43, 0x20000
    s_mov_b32 s46, 1280
    s_mov_b32 s47, 0x20000
    s_setprio 3
    """)
    LANE = 167
    a("s_mov_b32 s15, 0\ns_mov_b32 s16, 0")
    for _ in range(3): dma_chunk(a, fw.VKV)
    fw.tile_coords(a, 12, 13)
    fw.lane_setup(a, LANE, 14, WBUF)
    fw.dma_offsets(a, LANE, fw.VD, "w2", 13)
    a(f"""
    s_lshl_b32 s18, s12, 6
    s_lshl_b32 s19, s14, 4
    s_add_u32 s18, s18, s19
    s_lshr_b32 s22, s18, 5
    s_mul_i32 s22, s22, 98304
    s_add_u32 s22, s22, {H_OFF}
    s_mul_i32 s23, s14, {2*fw.STEP}
    s_mul_i32 s25, s14, {64*1280}
    s_waitcnt vmcnt(12)
    s_barrier
    """)
    for r in range(20): a(f"v_mov_b32 v{fw.ACCB+r}, 0")
    for c in range(8):
        if 2 <= c <= 6: dma_chunk(a, fw.VKV)
        if c == 0: fw.gate(a, LANE, 40, 44, 18)
        if c <= 5:
            for i in range(2):
                fw.dma_step(a, fw.VD, 36, (23, WBUF + (c & 1)*40960 + i*fw.STEP), 25)
                a(f"s_add_u32 s25, s25, {32*1280 if i == 0 else (256-32)*1280}")
            for i in range(8):
                a(f"buffer_load_dwordx4 {vr(fw.HB[c&1]+4*i,4)}, v{fw.VH}, s[8:11], s22 offen offset:{2048*(i&1)}")
                if i & 1: a("s_add_u32 s22, s22, 4096")
        if 1 <= c <= 6:
            m = c-1
            a(f"v_add_u32 v{fw.A1}, {(m&1)*40960}, v{fw.LA1}\nv_add_u32 v{fw.A2}, {(m&1)*40960}, v{fw.LA2}")
            fw.gemm_steps(a, fw.ACCB, [fw.HB[m&1]+4*i for i in range(8)], [i*fw.STEP for i in range(8)])
        if c < 7: a("s_waitcnt vmcnt(0)\ns_barrier")
    a(f"""
    v_sub_f32 v{fw.FT}, 1.0, v{fw.VG}
    s_lshl_b32 s22, s2, 2
    s_add_u32 s22, s22, s14
    s_mul_i32 s22, s22, 5376
    s_add_u32 s22, s22, {B_OFF}
    s_add_u32 s23, s22, 4096
    v_lshlrev_b32 v{fw.FT+1}, 4, v{LANE}
    v_lshlrev_b32 v{fw.FT+2}, 2, v{LANE}
    """)
    for r in range(20): a(f"v_mul_f32 v{fw.ACCB+r}, v{fw.ACCB+r}, v{fw.FT}")
    for i in range(4): a(f"buffer_store_dwordx4 {vr(fw.ACCB+4*i,4)}, v{fw.FT+1}, s[8:11], s22 offen offset:{1024*i}")
    a(f"buffer_store_dwordx4 {vr(fw.ACCB+16,4)}, v{fw.FT+1}, s[8:11], s23 offen")
    a(f"buffer_store_dword v{fw.VG}, v{fw.FT+2}, s[8:11], s23 offen offset:1024")
    a(f"""
    s_add_u32 s14, s14, 8
    v_mov_b32 v40, {FLAG_LDS}
    s_barrier
    ds_read_b32 v40, v40
    s_waitcnt lgkmcnt(0)
    v_readfirstlane_b32 s24, v40
    s_nop 1
    s_cmp_eq_u32 s24, 0
    s_cbranch_scc1 {L('end')}
    s_mov_b32 s15, 0
    s_mov_b32 s19, 8
    s_waitcnt vmcnt(0)
    """)
    a.label(L('lmax'))
    a("s_barrier\ns_mov_b32 s16, 0")
    dma_chunk(a, fw.VKV)
    a(f"s_waitcnt vmcnt(0)\ns_barrier\ns_sub_u32 s19, s19, 1\ns_cmp_lg_u32 s19, 0\ns_cbranch_scc1 {L('lmax')}\ns_barrier")
    a("s_mov_b32 s15, 0\ns_mov_b32 s16, 0")
    for _ in range(3): dma_chunk(a, fw.VKV)
    a("s_mov_b32 s19, 6\ns_waitcnt vmcnt(12)\ns_barrier\ns_waitcnt vmcnt(0)\ns_barrier")
    a.label(L('lloop'))
    a("s_waitcnt vmcnt(0)\ns_barrier")
    dma_chunk(a, fw.VKV)
    a(f"s_sub_u32 s19, s19, 1\ns_cmp_lg_u32 s19, 0\ns_cbranch_scc1 {L('lloop')}\ns_branch {L('end')}")
    a.label(L('compute'))
    a(f"""
    v_lshlrev_b32 v{LKT}, 3, v{TMP+1}
    v_add_u32 v{LKT}, 8192, v{LKT}
    v_lshrrev_b32 v{TMP+2}, 5, v{TMP+1}       ; h
    v_bfe_u32 v{TMP+3}, v{TMP+1}, 2, 2        ; r
    v_lshl_add_u32 v{TMP+2}, v{TMP+2}, 2, v{TMP+3}
    v_mul_u32_u24 v{TMP+2}, 48, v{TMP+2}
    v_and_b32 v{TMP+3}, 3, v{TMP+1}           ; c
    v_and_b32 v{TMP+4}, 1, v{TMP+3}
    v_lshlrev_b32 v{TMP+4}, 4, v{TMP+4}       ; (c&1)*16
    v_lshrrev_b32 v{TMP+5}, 1, v{TMP+3}
    v_lshl_add_u32 v{TMP+4}, v{TMP+5}, 3, v{TMP+4}
    v_min_u32 v{TMP+5}, 1, v{TMP+3}
    v_lshl_add_u32 v{TMP+5}, v{TMP+5}, 3, 32
    v_and_b32 v{TMP+3}, 16, v{TMP+1}
    v_cmp_eq_u32 vcc, 0, v{TMP+3}
    s_lshl_b32 s25, s13, 3
    s_add_u32 s25, s25, s14
    v_cndmask_b32 v{TMP+4}, v{TMP+5}, v{TMP+4}, vcc
    v_add3_u32 v{LV}, v{TMP+2}, v{TMP+4}, 0
    v_add_u32 v{LV}, 10240, v{LV}
    ; Q offsets
    s_lshl_b32 s26, s12, 6
    s_add_u32 s26, s26, s25
    s_lshl_b32 s27, s26, 10            ; (head*64+blk)*1024
    s_add_u32 s27, s27, {QM_OFF}
    s_lshl_b32 s28, s26, 8             ; (head*64+blk)*256
    s_add_u32 s28, s28, {QT_OFF}
    v_and_b32 v{TMP+2}, 31, v{TMP+1}
    v_lshlrev_b32 v{TMP+3}, 3, v{TMP+2}       ; (lane&31)*8
    ; O offsets
    s_mul_i32 s29, s25, 40960
    s_add_u32 s29, s29, {O_OFF}
    s_lshl_b32 s30, s12, 10
    s_add_u32 s30, s30, s29
    v_add_u32 v{OOFF}, s30, v{LK}
    s_lshr_b32 s30, s12, 2
    s_add_u32 s30, s30, 32
    s_lshl_b32 s30, s30, 10
    s_add_u32 s30, s30, s29
    s_bfe_u32 s31, s12, 0x10001
    s_lshl_b32 s31, s31, 9
    s_add_u32 s30, s30, s31
    s_and_b32 s31, s12, 1
    s_lshl_b32 s31, s31, 3
    s_add_u32 s30, s30, s31
    v_lshlrev_b32 v{OTOFF}, 4, v{TMP+2}
    v_add_u32 v{OTOFF}, s30, v{OTOFF}
    v_mov_b32 v{TMP+4}, {FLAG_LDS}
    v_mov_b32 v{TMP+5}, 0
    ds_write_b32 v{TMP+4}, v{TMP+5}
    s_waitcnt lgkmcnt(0)
    buffer_load_dwordx4 {vr(QM,4)}, v{LK}, s[8:11], s27 offen
    buffer_load_dwordx2 {vr(QT,2)}, v{TMP+3}, s[8:11], s28 offen
    """)
    a.label(L('restart'))
    a(f"""
    v_mov_b32 v{AK}, v{LK}
    v_mov_b32 v{AKT}, v{LKT}
    v_mov_b32 v{AV}, v{LV}
    """)
    for j in range(16): a(f"v_mov_b32 v{O+j}, 0")
    a("s_waitcnt vmcnt(0)\ns_barrier"); st()
    q.rd("ka", rd_ka(0)); q.rd("kb", rd_kb(0)); q.rd("kt", rd_kt(0))
    for g in range(4): q.rd(f"v{g}", rd_v(g, 0))
    a(f"s_cmp_lg_u32 s20, 0\ns_cbranch_scc1 {L('havem')}")
    a("s_waitcnt lgkmcnt(8)")
    a(qk_a(SX, "0")); a(qk_b(SX, "0")); a("s_nop 9"); a(qk_t(SX)); a("s_nop 15\ns_nop 3")
    rowmax_to_negm(a, SX); cross_half_neg(a, TMP)
    a.label(L('havem'))
    q.wait("kt"); a("s_nop 0")
    a(qk_a(SX)); q.rd("ka", rd_ka(1)); a(qk_b(SX)); q.rd("kb", rd_kb(1)); a("s_nop 8"); a(qk_t(SX)); q.rd("kt", rd_kt(1))
    a(f"s_mov_b32 s18, {CHUNK}\ns_mov_b32 s19, 7\ns_nop 15\ns_nop 0")
    if "nords" in OPT: a("s_waitcnt lgkmcnt(0)"); q.q = []; q.on = True
    if "prio" in OPT: a(f"s_cmp_lt_u32 s14, 4\ns_cbranch_scc1 {L('noprio')}\ns_setprio 1"); a.label(L('noprio'))
    iteration(a, q, 0, 2, None, 1, first=True, prio=1)
    iteration(a, q, 1, 3, 1, 2, prio=0)
    state = list(q.q); st(); a("s_waitcnt lgkmcnt(0)" if ts else "")
    for rep in range(7 if ts == 2 else 1):
        if ts != 2: a.label(L('loop'))
        if "nobar" not in OPT: a("s_barrier")
        a(f"v_add_u32 v{AK}, s18, v{LK}\nv_add_u32 v{AKT}, s18, v{LKT}")
        iteration(a, q, 0, 0, 2, 3, prio=3)
        iteration(a, q, 1, 1, 3, 0, v_switch=f"v_add_u32 v{AV}, s18, v{LV}", prio=2)
        a(f"s_add_u32 s18, s18, {CHUNK}\ns_cmp_eq_u32 s18, {NSLOT*CHUNK}\ns_cselect_b32 s18, 0, s18")
        iteration(a, q, 0, 2, 0, 1, prio=1)
        iteration(a, q, 1, 3, 1, 2, prio=0)
        assert q.q == state, (q.q, state)
        if ts == 2: st(); a("s_waitcnt lgkmcnt(0)")
        else: a(f"s_sub_u32 s19, s19, 1\ns_cmp_lg_u32 s19, 0\ns_cbranch_scc1 {L('loop')}")
    iteration(a, q, 0, None, 2, 3, do_k=False, prio=3)
    iteration(a, q, 1, None, 3, None, do_qk=False, do_vnext=False, prio=2)
    q.wait("v3"); a("s_nop 1"); a(pv(3)); st()
    a("s_nop 11")
    t = TMP
    a(f"v_rcp_f32 v{t}, v{O+12}")
    a(f"v_mul_f32 v{t+1}, 0, v{O}")
    for j in range(1, 12): a(f"v_fmac_f32 v{t+1}, 0, v{O+j}")
    a(f"s_mov_b32 s24, 0x7b800000        ; 2^120")
    a(f"v_add_f32 v{t+1}, v{t+1}, v{O+12}")
    for j in range(12): a(f"v_mul_f32 v{O+j}, v{O+j}, v{t}")
    a(f"v_cmp_gt_f32 vcc, s24, v{t+1}")
    for j in range(6): a(f"v_cvt_pk_bf16_f32 v{SX+j}, v{O+2*j}, v{O+2*j+1}")
    a(f"""
    s_mov_b64 s[24:25], vcc
    buffer_store_dwordx4 {vr(SX,4)}, v{OOFF}, s[8:11], 0 offen
    s_mov_b32 exec_hi, 0
    buffer_store_dwordx2 {vr(SX+4,2)}, v{OTOFF}, s[8:11], 0 offen
    s_mov_b64 exec, -1
    s_cmp_lg_u32 s20, 0
    s_cbranch_scc1 {L('end')}
    v_mov_b32 v{t+4}, {FLAG_LDS}
    s_cmp_eq_u64 s[24:25], -1
    s_cbranch_scc1 {L('vote')}
    v_mov_b32 v{t+5}, 1
    ds_write_b32 v{t+4}, v{t+5}
    """)
    a.label(L('vote'))
    a(f"""
    s_waitcnt lgkmcnt(0)
    s_barrier
    ds_read_b32 v{t+5}, v{t+4}
    s_waitcnt lgkmcnt(0)
    v_readfirstlane_b32 s24, v{t+5}
    s_nop 1
    s_cmp_eq_u32 s24, 0
    s_cbranch_scc1 {L('end')}
    s_mov_b32 s20, 1
    s_mov_b32 s15, 0
    s_mov_b32 s19, 8
    v_mov_b32 v{t+3}, 0xff800000
    v_mov_b32 v{AK}, v{LK}
    v_mov_b32 v{AKT}, v{LKT}
    s_waitcnt vmcnt(0)
    """)
    a.label(L('maxloop'))
    a("s_barrier\ns_barrier")
    for li in range(4):
        a(rd_ka(li)); a(rd_kb(li)); a(rd_kt(li)); a("s_waitcnt lgkmcnt(0)")
        a(qk_a(SX, "0")); a(qk_b(SX, "0")); a("s_nop 9"); a(qk_t(SX)); a("s_nop 15\ns_nop 3")
        rowmax_to_negm(a, SX, run=t+3)
    a(f"s_sub_u32 s19, s19, 1\ns_cmp_lg_u32 s19, 0\ns_cbranch_scc1 {L('maxloop')}")
    cross_half_neg(a, t+3)
    a(f"s_barrier\ns_branch {L('restart')}")
    a.label(L('end'))
    st(); st.dump(14, 12, 0)
    a.label(L('exit'))
    a("s_endpgm")
    return a

if __name__ == "__main__":
    import sys
    for spec in sys.argv[1:] or ["base"]:
        OPT.clear(); OPT.add('desc'); OPT.update(spec.split("+"))
        for ts in (0, 1):
            a = gen_attn(ts=ts)
            n = check(a.lines)
            if n: print("hazards:", n)
            open("k2_%s%s.s" % (spec, "_ts%d" % ts if ts else ""), "w").write(module([("k2_kernel", a.text(), NV, 256, 768, LDS_BYTES)]))
```

```python
from asm import *
from layout import *
from fw import *
def gen_k3(name="k3_kernel", ts=False):
    a = Asm(); st = Stamps(a, ts, 40)
    L = lambda s: f"{name}_{s}"
    LANE = 167
    a(f"s_cmp_ge_u32 s2, 256\ns_cbranch_scc1 {L('exit')}")
    st()
    a(f"""
    s_load_dwordx2 s[4:5], s[0:1], 80
    s_load_dwordx2 s[8:9], s[0:1], 16
    s_load_dwordx2 s[24:25], s[0:1], 64
    v_lshrrev_b32 v1, 6, v0
    v_and_b32 v{LANE}, 63, v0
    s_mov_b32 s94, 160
    v_readfirstlane_b32 s14, v1
    """)
    tile_coords(a, 12, 13)
    lane_setup(a, LANE, 14, 0)
    dma_offsets(a, LANE, VD, "main", 13)
    dma_offsets(a, LANE, VD+5, "tail", 13)
    a(f"""
    s_mov_b32 s6, {WS_USED}
    s_mov_b32 s7, 0x20000
    s_mov_b32 s10, 819200
    s_mov_b32 s11, 0x20000
    s_mov_b32 s26, 2621440
    s_mov_b32 s27, 0x20000
    s_mul_i32 s16, s14, {4*STEP}
    s_mul_i32 s17, s14, {4*40*1280}
    s_waitcnt lgkmcnt(0)
    """)
    for i in range(4):
        dma_step(a, VD, 8, (16, i*STEP), 17)
        a(f"s_add_u32 s17, s17, {40*1280}")
    a(f"s_mul_i32 s16, s14, {STEP}\ns_mul_i32 s17, s14, {160*1280}")
    dma_step(a, VD+5, 8, (16, 16*STEP), 17)
    a(f"""
    s_lshl_b32 s18, s12, 6
    s_lshl_b32 s19, s14, 4
    s_add_u32 s18, s18, s19
    s_lshr_b32 s19, s18, 5
    s_mul_i32 s19, s19, 40960
    s_add_u32 s19, s19, {O_OFF}
    s_lshl_b32 s20, s2, 2
    s_add_u32 s20, s20, s14
    s_mul_i32 s20, s20, 5376
    s_add_u32 s20, s20, {B_OFF}
    v_lshlrev_b32 v{FT}, 4, v{LANE}
    v_lshlrev_b32 v{FT+1}, 2, v{LANE}
    s_add_u32 s21, s20, 4096
    """)
    for i in range(4): a(f"buffer_load_dwordx4 {vr(ACCB+4*i,4)}, v{FT}, s[4:7], s20 offen offset:{1024*i}")
    a(f"buffer_load_dwordx4 {vr(ACCB+16,4)}, v{FT}, s[4:7], s21 offen")
    a(f"buffer_load_dword v{VG}, v{FT+1}, s[4:7], s21 offen offset:1024")
    a("s_nop 0")
    for i in range(20):
        a(f"buffer_load_dwordx4 {vr(80+4*i,4)}, v{VH}, s[4:7], s19 offen offset:{2048*(i&1)}")
        if i & 1: a("s_add_u32 s19, s19, 4096")
    for r in range(20): a(f"v_mov_b32 v{ACCA+r}, 0")
    a(f"v_mov_b32 v{A1}, v{LA1}\nv_mov_b32 v{A2}, v{LA2}")
    a("s_waitcnt vmcnt(20)\ns_barrier")
    st()
    def sw():
        a(f"v_add_u32 v{A1}, {10*STEP}, v{LA1}\nv_add_u32 v{A2}, {10*STEP}, v{LA2}"); return 0
    offs = [i*STEP for i in range(10)] + [sw] + [i*STEP for i in range(1, 10)]
    gemm_steps(a, ACCA, [80+4*i for i in range(20)], offs, pre={i: f"s_waitcnt vmcnt({19-i})" for i in range(20)})
    st()
    a("s_nop 1")
    final_store(a, LANE, 24, 18, 13)
    if ts: a("s_waitcnt vmcnt(0)")
    st(); st.dump(14, 4, 0, slot=3)
    a.label(L('exit'))
    a("s_endpgm")
    return a
if __name__ == "__main__":
    a = gen_k3()
    print(check(a.lines))
    open("k3.s", "w").write(module([("k3_kernel", a.text(), FNV, 256, 256, 20*STEP)]))
```

```python
S, D, H, DH, F = 2048, 640, 32, 20, 1536
QM_OFF = 0
QT_OFF = QM_OFF + 32*64*1024
KV_OFF = QT_OFF + 32*2048*8
CHUNK  = 22528
KV_HEAD = 8*CHUNK
O_OFF  = KV_OFF + 32*KV_HEAD
H_OFF  = O_OFF + 64*40*1024
G_OFF  = H_OFF + 64*96*1024
B_OFF  = G_OFF + 8192
WS_USED = B_OFF + 1024*5376
QSCALE = (20 ** -0.5) * 1.4426950408889634
```

```python
from asm import *
from layout import *
import k1, k2, k3, fw, sys
HDR = open("gated_mix__mha_block__dense_activation_mish__prompt.s.ref").read().split("; Override launch")[0].rstrip()
def build(ts=0):
    A = [k1.gen_k1(ts=ts), k2.gen_attn(ts=ts), k3.gen_k3(ts=ts)]
    for a in A:
        n = check(a.lines)
        if n: print("hazards", n)
    return module([("k1_kernel", A[0].text(), k1.NV, 256, 768, k1.NSL*k1.SLOT),
                   ("k2_kernel", A[1].text(), k2.NV, 256, 768, k2.LDS_BYTES),
                   ("k3_kernel", A[2].text(), fw.FNV, 256, 256, 20*fw.STEP)], HDR)
open("base3.s", "w").write(build(0))
open("base3_ts1.s", "w").write(build(1))
```

```python
from asm import *
from layout import *
import k1, k2, k3, fw, sys
from build3 import HDR
A = {"k1": ("k1_kernel", k1.gen_k1().text(), k1.NV, 256, 768, k1.NSL*k1.SLOT),
     "k2": ("k2_kernel", k2.gen_attn().text(), k2.NV, 256, 768, k2.LDS_BYTES),
     "k3": ("k3_kernel", k3.gen_k3().text(), fw.FNV, 256, 256, 20*fw.STEP),
     "e": ("e_kernel", "s_endpgm\n", 8, 256, 256, 0)}
for nm, l in {"B": "k1 k2 k3 e", "C": "k1 k1 k2 k3", "D": "k1 k2 k2 k3", "E": "k1 k2 k3 k3", "F": "e k1 k2 k3"}.items():
    open(f"x_{nm}.s", "w").write(module([A[x] for x in l.split()], HDR))
```

```python
import re

TRANS = ("v_exp_f32","v_log_f32","v_rcp_f32","v_rsq_f32","v_sqrt_f32","v_sin_f32","v_cos_f32","v_exp_f16","v_rcp_iflag_f32")
def mfma_passes(op):
    if "_2b_" in op: return 16
    if "_4b_" in op: return 8
    if "_16b_" in op: return 2
    if "32x32" in op: return 8
    if "16x16" in op: return 4
    raise ValueError(op)

_reg = re.compile(r"^-?\|?(?:abs\()?([vas])(?:(\d+)|\[(\d+):(\d+)\])\)?\|?$")
def regs(tok):
    tok = tok.strip()
    if tok == "vcc": return [("s", 106), ("s", 107)]
    if tok == "exec": return [("s", 126), ("s", 127)]
    if tok == "m0": return [("s", 124)]
    m = _reg.match(tok)
    if not m: return []
    c = m.group(1)
    if m.group(2) is not None: return [(c, int(m.group(2)))]
    return [(c, i) for i in range(int(m.group(3)), int(m.group(4)) + 1)]

class Ins:
    def __init__(self, text):
        self.text = text
        t = text.split(";")[0].strip()
        self.op = t.split()[0] if t else ""
        rest = t[len(self.op):].strip()
        ops = [x.strip() for x in rest.split(",")] if rest else []
        if ops: ops[-1] = ops[-1].split()[0] if ops[-1] else ops[-1]
        self.ops = ops
        op = self.op
        self.mfma = op.startswith("v_mfma") or op.startswith("v_smfmac")
        self.valu = op.startswith("v_") and not self.mfma
        self.salu = op.startswith("s_")
        self.ds = op.startswith("ds_")
        self.vmem = op.startswith("buffer_") or op.startswith("global_")
        self.lds_dma = self.vmem and (" lds" in t or "load_lds" in op)
        self.trans = any(op.startswith(x) for x in TRANS)
        R = [regs(o) for o in ops]
        self.w = []; self.r = []
        if self.mfma:
            self.w = R[0]; self.a = R[1]; self.b = R[2]; self.c = R[3]; self.r = R[1] + R[2] + R[3]
            self.passes = mfma_passes(op)
        elif self.valu:
            if op.startswith("v_cmp"):
                self.w = R[0]; self.r = sum(R[1:], [])
            elif op.startswith("v_permlane") and "swap" in op or op.startswith("v_swap"):
                self.w = R[0] + R[1]; self.r = R[0] + R[1]
            elif "_co_" in op or op.startswith("v_div_scale"):
                self.w = R[0] + R[1]; self.r = sum(R[2:], [])
            else:
                self.w = R[0]; self.r = sum(R[1:], [])
                if op.startswith(("v_fmac", "v_pk_fmac", "v_writelane", "v_dot2c")) or "PRESERVE" in t: self.r = self.r + R[0]
        elif self.ds:
            if op.startswith(("ds_read", "ds_bpermute", "ds_permute", "ds_swizzle")) or "_rtn_" in op:
                self.w = R[0]; self.r = sum(R[1:], [])
            else:
                self.r = sum(R, [])
        elif self.vmem:
            if self.lds_dma: self.r = sum(R, []) + [("s", 124)]
            elif "load" in op: self.w = R[0]; self.r = sum(R[1:], [])
            elif "atomic" in op and (" sc0" in t):
                self.w = R[0]; self.r = sum(R, [])
            else: self.r = sum(R, [])
            self.store_data = []
            if "store" in op and ("x3" in op or "x4" in op):
                self.store_data = R[0] if op.startswith("buffer_") else R[1]
        elif self.salu:
            if op.startswith(("s_cmp", "s_cbranch", "s_branch", "s_waitcnt", "s_nop", "s_barrier", "s_endpgm", "s_setprio", "s_sleep")):
                self.r = sum(R, [])
            else:
                self.w = R[0] if R else []; self.r = sum(R[1:], [])
        self.states = 1
        if op == "s_nop": self.states = int(ops[0], 0) + 1

def need(p, c):
    n = 0
    pw = set(p.w); cr = set(c.r); cw = set(c.w)
    vw = {x for x in pw if x[0] in "va"}
    if p.mfma:
        tab = lambda a: a[{2:0,4:1,8:2,16:3}[p.passes]]
        if c.mfma:
            if vw & (set(c.a) | set(c.b)): n = max(n, tab((5,8,12,20)))
            if vw & set(c.c):
                if c.c == p.w and c.passes == p.passes: n = max(n, tab((2,0,0,0)))
                else: n = max(n, tab((4,6,10,18)))
            elif vw & cw: n = max(n, tab((4,6,10,18)))
        elif c.valu or c.ds or c.vmem:
            if vw & (cr | cw): n = max(n, tab((5,8,12,20)))
        if c.valu and set(p.c) & cw: n = max(n, tab((1,3,7,15)))
    if p.valu:
        if c.mfma and vw & cr: n = max(n, 2)
        if p.op.startswith("v_dot") and c.valu and vw & (cr | cw) and not (c.op == p.op and not (vw & set(sum([regs(o) for o in c.ops[1:3]], [])))): n = max(n, 3)
        if p.trans and c.valu and not c.trans and vw & cr: n = max(n, 1)
        if c.op.startswith("v_permlane") and vw & cr: n = max(n, 2)
        if c.op.startswith(("v_readlane", "v_readfirstlane")) and vw & cr: n = max(n, 1)
        if "dpp" in c.text and vw & cr: n = max(n, 2)
        if ("sdwa" in p.op or "op_sel" in p.text) and c.valu and vw & (cr | cw): n = max(n, 1)
        sw = {x for x in pw if x[0] == "s"}
        if sw:
            if c.vmem and sw & cr: n = max(n, 5)
            if c.valu and sw & cr: n = max(n, 4 if c.op.startswith(("v_readlane", "v_writelane", "v_div_fmas")) else 2)
            if p.op.startswith("v_cmpx") and c.mfma: n = max(n, 4)
    if p.salu and ("s", 124) in pw and c.lds_dma: n = max(n, 1)
    if p.vmem and getattr(p, "store_data", None) and set(p.store_data) & cw: n = max(n, 2)
    return n

class Asm:
    def __init__(self):
        self.lines = []
    def __call__(self, text):
        for l in text.strip("\n").split("\n"):
            l = l.strip()
            if l: self.lines.append(l)
    def label(self, name): self.lines.append(name + ":")
    def text(self): return "\n".join(("" if l.endswith(":") or l.startswith(".") else "    ") + l for l in self.lines) + "\n"

def check(lines, verbose=True):
    ins = []; labels = {}
    for l in lines:
        t = l.split(";")[0].strip()
        if not t or t.startswith("."): continue
        if t.endswith(":"): labels[t[:-1]] = len(ins); continue
        ins.append(Ins(l))
    def succ(i):
        I = ins[i]
        if I.op == "s_endpgm": return []
        if I.op == "s_branch": return [labels[I.ops[0]]]
        if I.op.startswith("s_cbranch"): return [i + 1] + ([labels[I.ops[0]]] if I.ops[0] in labels else [])
        return [i + 1] if i + 1 < len(ins) else []
    bad = set()
    for i, p in enumerate(ins):
        if not (p.mfma or p.valu or (p.salu and ("s", 124) in p.w) or (p.vmem and getattr(p, "store_data", None))): continue
        stack = [(j, 0) for j in succ(i)]; seen = {}
        while stack:
            j, d = stack.pop()
            if d >= 20 or j >= len(ins) or seen.get(j, 99) <= d: continue
            seen[j] = d
            c = ins[j]
            n = need(p, c)
            if n > d: bad.add((i, j, n, d))
            for k in succ(j): stack.append((k, d + c.states))
    if verbose:
        for i, j, n, d in sorted(bad):
            print(f"HAZARD need {n} have {d}:\n   [{i}] {ins[i].text}\n   [{j}] {ins[j].text}")
    return len(bad)

def kernel_wrap(name, body, vgprs, sgprs=102, accum=None):
    accum = accum or ((vgprs + 3) // 4 * 4)
    code = f".globl {name}\n.p2align 8\n.type {name},@function\n{name}:\n{body}"
    desc = f""".p2align 6
.amdhsa_kernel {name}
  .amdhsa_next_free_vgpr {vgprs}
  .amdhsa_next_free_sgpr {sgprs}
  .amdhsa_accum_offset {accum}
  .amdhsa_group_segment_fixed_size 0
  .amdhsa_kernarg_size 88
  .amdhsa_user_sgpr_count 2
  .amdhsa_user_sgpr_kernarg_segment_ptr 1
  .amdhsa_system_sgpr_workgroup_id_x 1
.end_amdhsa_kernel
"""
    return code, desc

def module(kernels, header=""):
    out = [header] if header else []
    for n, b, v, g, blk, lds in kernels:
        out.append(f"; @launch kernel={n} grid=({g},1,1) block=({blk},1,1) lds={lds}")
    out.append('.amdgcn_target "amdgcn-amd-amdhsa--gfx950"\n.text')
    descs = []; done = set()
    for n, b, v, g, blk, lds in kernels:
        if n in done: continue
        done.add(n)
        c, d = kernel_wrap(n, b, v)
        out.append(c); descs.append(d)
    out.append('.section .rodata,"a"')
    out += descs
    return "\n".join(out)

TS_OFF = 200 << 20
class Stamps:
    def __init__(self, a, on, base=60, rt=False):
        self.a = a; self.on = on; self.n = 0; self.base = base; self.rt = rt
    def __call__(self):
        if not self.on: return
        if self.rt:
            r = self.base + 2*self.n
            self.a(f"s_memrealtime s[{r}:{r+1}]")
        else:
            r = self.base + 4*self.n
            self.a(f"s_memtime s[{r}:{r+1}]\ns_memrealtime s[{r+2}:{r+3}]")
        self.n += 1
    def dump(self, wave_sgpr, nwaves, vt, slot=0):
        if not self.on: return
        a = self.a
        a(f"""
        s_waitcnt lgkmcnt(0)
        s_load_dwordx2 s[96:97], s[0:1], 80
        s_mul_i32 s100, s2, {nwaves}
        s_add_u32 s100, s100, s{wave_sgpr}
        s_lshl_b32 s100, s100, 7
        s_add_u32 s100, s100, {TS_OFF + slot*(1<<20)}
        s_mov_b32 s98, 0x10000000
        s_mov_b32 s99, 0x20000
        s_mov_b64 exec, 1
        v_mov_b32 v{vt+2}, s100
        s_waitcnt lgkmcnt(0)
        """)
        for i in range(self.n):
            r = self.base + (2*i if self.rt else 4*i)
            a(f"v_mov_b32 v{vt}, s{r}\nv_mov_b32 v{vt+1}, s{r if self.rt else r+2}\nbuffer_store_dwordx2 v[{vt}:{vt+1}], v{vt+2}, s[96:99], 0 offen offset:{8*i}\ns_nop 1")
        a("s_waitcnt vmcnt(0)")
```

```python
from asm import *
from layout import *
import struct, sys
import k2 as AT
import fw
from fw import vr
def fbits(x): return "0x%08x" % struct.unpack("<I", struct.pack("<f", x))[0]

CFG = dict(NF1=15, NPOLL=19, NTOK=3, FREE_EARLY=1, INIT=2, CATCH=2, PF=0, PFAT=1, PF2=0, PF2AT=3, PF3=0, PF3AT=0, ROT=2, PFSTRIDE=64, GPF=0, G1=4, G2=6, G3=8, RG=1, RM=7, RR=1, RA=5, RB=4, PK=1, OUTSC=0, BAT=1, SENT=1, DEFER=0, NOFFN=0, FPRIO=3, TAG=1, STAG=1, O1L=0, O1H=8, O2L=1, O2H=4, ATS=0, RTAIL=2, CODEPF=1, TSN=(7, 8, 12, 13), NOMM=0, NORD=0, SPIN=1 << 19)
SLOT, NSL = 32768, 5
KV_A, KV_B, KV_C = 0, 32768, 32768 + CHUNK
QM_LDS = CHUNK
QT_LDS = QM_LDS + 8192
WBUF = KV_C + CHUNK
VOTE = WBUF + 81920
LDS_BYTES = 163840
SC = " sc1"

class VmQ:
    def __init__(self, a): self.a = a; self.q = []
    def __call__(self, tag, text):
        self.a(text); self.q.append(tag)
    def wait(self, *tags):
        idx = [i for i, t in enumerate(self.q) if t in tags]
        if not idx: return
        n = len(self.q) - 1 - max(idx)
        assert n <= 63
        self.a(f"s_waitcnt vmcnt({n})")
        self.q = self.q[max(idx)+1:]
    def drain(self):
        self.a("s_waitcnt vmcnt(0)"); self.q = []

def srd(a, r, size, ptr=None):
    if ptr is not None: a(f"s_mov_b32 s{r}, s{ptr}\ns_mov_b32 s{r+1}, s{ptr+1}")
    a(f"s_mov_b32 s{r+2}, {size}\ns_mov_b32 s{r+3}, 0x20000")

ACC = (0, 16)
FB = 32
AX, AW, LX, LW = 153, 157, 159, 160
T = 80
BIAS = 32
HOUT = 104
LANE16, VADDRV = 163, 164
PFD = 128
def xf(b, s): return FB + 48*b + 12*s
def wf(b, s, t): return FB + 48*b + 12*s + 4 + 4*t

def rd_stage(b, ntile, stride):
    L = []
    for s in range(4):
        L.append(f"ds_read_b128 {vr(xf(b,s),4)}, v{AX+s}")
        for t in range(ntile):
            o = 16*s*stride + (64*t if stride == 192 else 0)
            ad = AW + (t if stride == 256 else 0)
            L.append(f"ds_read_b64_tr_b16 {vr(wf(b,s,t),2)}, v{ad} offset:{o}")
            L.append(f"ds_read_b64_tr_b16 {vr(wf(b,s,t)+2,2)}, v{ad} offset:{o+4*stride}")
    return L
def mm(b, s, t): return f"v_mfma_f32_32x32x16_bf16 {vr(ACC[t],16)}, {vr(wf(b,s,t),4)}, {vr(xf(b,s),4)}, {vr(ACC[t],16)}"
def set_addr(a, stride):
    a(f"v_add_u32 v{AX}, s18, v{LX}\nv_add_u32 v{AW}, s18, v{LW}")
    if stride == 256: a(f"v_add_u32 v{AW+1}, s18, v{LW+1}")
    a(f"v_xor_b32 v{AX+1}, 32, v{AX}\nv_xor_b32 v{AX+2}, 64, v{AX}\nv_xor_b32 v{AX+3}, 0x60, v{AX}")
    a(f"s_mov_b32 s43, s18\ns_add_u32 s18, s18, {SLOT}\ns_cmp_eq_u32 s18, {NSL*SLOT}\ns_cselect_b32 s18, 0, s18")

def kloop(a, L, tag, ntile, stride, hooks, last=None, order=None):
    def stage(b, reads, tail):
        ms = [mm(b, s, t) for s in range(4) for t in range(ntile)]
        if CFG['NOMM']: ms = ["s_nop 0"]*len(ms)
        if order is not None:
            for m in ms[:order]: a(m)
            for t in reads: a(t)
            if tail: set_addr(a, stride)
            for m in ms[order:]: a(m)
            return
        nslot = len(ms) - CFG['RTAIL']*ntile//2
        per = -(-len(reads) // nslot) if reads else 0
        for i, m in enumerate(ms):
            a(m)
            for t in reads[i*per:(i+1)*per]: a(t)
            if i == nslot-1 and tail: set_addr(a, stride)
    def sync(b, first=False):
        for m, text in hooks.items():
            if first:
                if m == 1: a(text)
            elif (m & 1) == b and m > 1:
                a(f"s_cmp_lg_u32 s19, {m}\ns_cbranch_scc1 {L(tag+'_h%d' % m)}"); a(text); a.label(L(tag+'_h%d' % m))
        a("s_add_u32 s19, s19, 1\ns_waitcnt lgkmcnt(0)\ns_barrier")
    set_addr(a, stride)
    a("s_mov_b32 s19, 1\ns_barrier")
    for t in rd_stage(0, ntile, stride): a(t)
    set_addr(a, stride)
    sync(1, True)
    a.label(L(tag))
    stage(0, rd_stage(1, ntile, stride), True)
    a(f"s_cmp_eq_u32 s19, 10\ns_cbranch_scc1 {L(tag+'_last')}")
    sync(0)
    stage(1, rd_stage(0, ntile, stride), True)
    sync(1)
    a(f"s_branch {L(tag)}")
    a.label(L(tag+'_last'))
    a("s_mov_b32 s18, s43\ns_waitcnt lgkmcnt(0)")
    if last: a(last)
    stage(1, [], False)

def pack16(a, src, dst, scale=None, n=16):
    if scale:
        for r in range(n): a(f"v_mul_f32 v{src+r}, {scale}, v{src+r}")
    for r in range(0, n, 2): a(f"v_cvt_pk_bf16_f32 v{dst+r//2}, v{src+r}, v{src+r+1}")
def pair_info(a, poff):
    a(f"s_mul_i32 s20, s13, 3\ns_add_u32 s20, s20, {poff}\ns_and_b32 s21, s20, 15\ns_lshr_b32 s20, s20, 4\ns_lshl_b32 s21, s21, 1")

def main_tile_store(a, L, tag, t, poff):
    acc = ACC[t]; d = T + 8*t
    pair_info(a, poff)
    a(f"s_cmp_lg_u32 s20, 0\ns_cbranch_scc1 {L(tag+'kv')}")
    pack16(a, acc, d, "s30")
    a(f"""
    s_lshl_b32 s21, s21, 16
    s_add_u32 s21, s21, s28
    s_add_u32 s22, s21, 65536
    buffer_store_dwordx4 {vr(d,4)}, v{LANE16}, s[4:7], s21 offen{SC}
    buffer_store_dwordx4 {vr(d+4,4)}, v{LANE16}, s[4:7], s22 offen{SC}
    s_branch {L(tag+'done')}
    """)
    a.label(L(tag+'kv'))
    pack16(a, acc, d)
    a(f"""
    s_mul_i32 s21, s21, {KV_HEAD}
    s_add_u32 s21, s21, s29
    s_cmp_lg_u32 s20, 1
    s_cbranch_scc1 {L(tag+'v')}
    s_add_u32 s21, s21, s31
    s_add_u32 s22, s21, {KV_HEAD}
    buffer_store_dwordx4 {vr(d,4)}, v{LANE16}, s[4:7], s21 offen{SC}
    buffer_store_dwordx4 {vr(d+4,4)}, v{LANE16}, s[4:7], s22 offen{SC}
    s_branch {L(tag+'done')}
    """)
    a.label(L(tag+'v'))
    a(f"""
    s_add_u32 s21, s21, s32
    s_add_u32 s22, s21, {KV_HEAD}
    buffer_store_dwordx4 {vr(d,4)}, v{VADDRV}, s[4:7], s21 offen{SC}
    buffer_store_dwordx4 {vr(d+4,4)}, v{VADDRV}, s[4:7], s22 offen{SC}
    """)
    a.label(L(tag+'done'))

def tail_tile_store(a, L):
    acc = ACC[1]
    a(f"""
    v_lshrrev_b32 v{T+20}, 4, v{LANE16}
    v_and_b32 v{T+16}, 31, v{T+20}
    v_lshrrev_b32 v{T+20}, 5, v{T+20}
    v_lshlrev_b32 v{T+19}, 4, v{T+16}
    v_lshlrev_b32 v{T+16}, 3, v{T+16}
    v_lshl_add_u32 v{T+17}, v{T+20}, 14, v{T+16}
    v_mul_u32_u24 v{T+20}, {KV_HEAD}, v{T+20}
    v_add_u32 v{T+18}, v{T+20}, v{T+16}
    v_add_u32 v{T+19}, v{T+19}, v{T+20}
    """)
    for j in range(3):
        tag = f"tt{j}"; d = (T+8, T+12, ACC[1]+12)[j]
        pair_info(a, j)
        a(f"s_cmp_lg_u32 s20, 0\ns_cbranch_scc1 {L(tag+'kv')}")
        pack16(a, acc+4*j, d, "s30", n=4)
        a(f"""
        s_lshl_b32 s21, s21, 14
        s_add_u32 s21, s21, s33
        buffer_store_dwordx2 {vr(d,2)}, v{T+17}, s[4:7], s21 offen{SC}
        s_branch {L(tag+'done')}
        """)
        a.label(L(tag+'kv'))
        pack16(a, acc+4*j, d, n=4)
        a(f"""
        s_mul_i32 s21, s21, {KV_HEAD}
        s_add_u32 s21, s21, s29
        s_cmp_lg_u32 s20, 1
        s_cbranch_scc1 {L(tag+'v')}
        s_add_u32 s21, s21, s34
        buffer_store_dwordx2 {vr(d,2)}, v{T+18}, s[4:7], s21 offen{SC}
        s_branch {L(tag+'done')}
        """)
        a.label(L(tag+'v'))
        a(f"""
        v_mov_b32 v{d+2}, 0x3f80
        v_mov_b32 v{d+3}, 0
        s_add_u32 s21, s21, s42
        buffer_store_dwordx4 {vr(d,4)}, v{T+19}, s[4:7], s21 offen{SC}
        """)
        a.label(L(tag+'done'))

def mish(a, acc, d):
    LOG2E = fbits(1.4426950408889634)
    for b in range(0, 16, 8):
        R = range(b, b+8); R2 = range(b, b+8, 2); tt = lambda r: T + 8 + (r & 7); uu = lambda r: T + 16 + (r & 7)
        p = lambda r: vr(r, 2)
        if CFG['PK']:
            for r in R2: a(f"v_pk_mul_f32 {p(tt(r))}, {p(acc+r)}, s[44:45]")
            for r in R: a(f"v_min_f32 v{tt(r)}, s35, v{tt(r)}")
            for r in R: a(f"v_exp_f32 v{tt(r)}, v{tt(r)}")
            for r in R2: a(f"v_pk_add_f32 {p(uu(r))}, {p(tt(r))}, s[46:47]")
            for r in R2: a(f"v_pk_mul_f32 {p(tt(r))}, {p(tt(r))}, {p(uu(r))}")
            for r in R2: a(f"v_pk_add_f32 {p(uu(r))}, {p(tt(r))}, s[46:47]")
            for r in R: a(f"v_rcp_f32 v{uu(r)}, v{uu(r)}")
            for r in R2: a(f"v_pk_mul_f32 {p(tt(r))}, {p(tt(r))}, {p(acc+r)}")
            for r in R2: a(f"v_pk_mul_f32 {p(tt(r))}, {p(tt(r))}, {p(uu(r))}")
        else:
            for r in R: a(f"v_mul_f32 v{tt(r)}, {LOG2E}, v{acc+r}")
            for r in R: a(f"v_min_f32 v{tt(r)}, s35, v{tt(r)}")
            for r in R: a(f"v_exp_f32 v{tt(r)}, v{tt(r)}")
            for r in R: a(f"v_add_f32 v{uu(r)}, 2.0, v{tt(r)}")
            for r in R: a(f"v_mul_f32 v{tt(r)}, v{tt(r)}, v{uu(r)}")
            for r in R: a(f"v_add_f32 v{uu(r)}, 2.0, v{tt(r)}")
            for r in R: a(f"v_rcp_f32 v{uu(r)}, v{uu(r)}")
            for r in R: a(f"v_mul_f32 v{tt(r)}, v{tt(r)}, v{acc+r}")
            for r in R: a(f"v_mul_f32 v{tt(r)}, v{tt(r)}, v{uu(r)}")
        for r in R2: a(f"v_cvt_pk_bf16_f32 v{d+r//2}, v{tt(r)}, v{tt(r+1)}")
def bias_init(a, t):
    for r in range(8):
        a(f"v_lshlrev_b32 v{ACC[t]+2*r}, 16, v{BIAS+8*t+r}\nv_and_b32 v{ACC[t]+2*r+1}, 0xffff0000, v{BIAS+8*t+r}")

def pf_addr(a, dst, lane, per_row, nrows, row0, rowbytes, colbase_sgpr, col0):
    st = CFG['PFSTRIDE']; per_row = per_row*64//st
    tot = per_row*nrows; share = -(-tot // 256)
    assert share <= 64
    magic = -(-(1 << 32) // per_row)
    a(f"""
    s_mul_i32 s17, s37, {share}
    v_min_u32 v{T}, {share-1}, v{lane}
    v_add_u32 v{T}, s17, v{T}
    v_min_u32 v{T}, {tot-1}, v{T}
    s_mov_b32 s17, {magic}
    v_mul_hi_u32 v{T+1}, v{T}, s17
    v_mul_u32_u24 v{T+2}, {per_row}, v{T+1}
    v_sub_u32 v{T}, v{T}, v{T+2}
    v_mul_u32_u24 v{T+1}, {rowbytes}, v{T+1}
    v_mul_u32_u24 v{T}, {st}, v{T}
    v_add3_u32 v{dst}, v{T}, v{T+1}, s{colbase_sgpr}
    v_add_u32 v{dst}, {row0*rowbytes + col0}, v{dst}
    """)


class A4:
    SX, SY, O = 0, 32, 64
    KA, KT, QM, QT, VF = 96, 100, 102, 110, 114
    P = (122, 126)
    XW, XR = 165, 166
    AK, AKT, AV, LK, LKT, LV, KMASK, TMP, OOFF, OTOFF = 136, 137, 138, 139, 140, 141, 142, 143, 151, 152
CONST_LDS = VOTE + 64
XCH = 0
def a4_ka(li, dst=A4.KA, ad=A4.AK): return f"ds_read_b128 {vr(dst,4)}, v{ad} offset:{li*1024}"
def a4_kt(li, dst=A4.KT, ad=A4.AKT): return f"ds_read_b64 {vr(dst,2)}, v{ad} offset:{li*256}"
def a4_v(g, li):
    o = (li*32 + g*16)*48
    return [f"ds_read_b64_tr_b16 {vr(A4.VF+4*g,2)}, v{A4.AV} offset:{o}", f"ds_read_b64_tr_b16 {vr(A4.VF+4*g+2,2)}, v{A4.AV} offset:{o+8*48}"]
def a4_qk(Y, j, ka=A4.KA): return f"v_mfma_f32_32x32x16_bf16 {vr(Y+16*j,16)}, {vr(ka,4)}, {vr(A4.QM+4*j,4)}, 0"
def a4_t(Y, j, kt=A4.KT): return f"v_mfma_f32_32x32x8_bf16 {vr(Y+16*j,16)}, {vr(kt,2)}, {vr(A4.QT+2*j,2)}, {vr(Y+16*j,16)}"
def a4_pv(G): return f"v_mfma_f32_32x32x16_bf16 {vr(A4.O+16*(G&1),16)}, {vr(A4.VF+4*(G>>1),4)}, {vr(A4.P[G&1],4)}, {vr(A4.O+16*(G&1),16)}"
def a4_iter(a, q, par, kli, v1li, v0li, prio, v_switch=None):
    X, Y = (A4.SX, A4.SY) if par == 0 else (A4.SY, A4.SX)
    g = lambda G: X + 16*(G & 1) + 8*(G >> 1)
    E = lambda G, lo, hi: [a(f"v_exp_f32 v{g(G)+j}, v{g(G)+j}") for j in range(lo, hi)]
    C = lambda G: [a(f"v_cvt_pk_bf16_f32 v{A4.P[G&1]+j}, v{g(G)+2*j}, v{g(G)+2*j+1}") for j in range(4)]
    a(f"s_setprio {prio}")
    q.wait("v0"); a(a4_qk(Y, 0)); E(0, 0, 3)
    a(a4_pv(3)); q.rd("v1", a4_v(1, v1li))
    if v_switch: a(v_switch)
    E(0, 3, 8); C(0)
    a(a4_qk(Y, 1)); q.rd("ka", a4_ka(kli)); E(1, 0, 3)
    a(a4_pv(0)); E(1, 3, 8); C(1)
    q.wait("v1"); a(a4_t(Y, 0)); E(2, 0, 3)
    a(a4_pv(1)); q.rd("v0", a4_v(0, v0li)); E(2, 3, 8); C(2)
    a(a4_t(Y, 1)); q.rd("kt", a4_kt(kli)); E(3, 0, 3)
    a(a4_pv(2)); E(3, 3, 8); C(3)
def a4_rowmax(a, X, dst, run=False):
    t = A4.TMP
    a(f"v_max3_f32 v{t}, v{X}, v{X+1}, v{X+2}")
    for j in range(3, 15, 2): a(f"v_max3_f32 v{t}, v{t}, v{X+j}, v{X+j+1}")
    a(f"v_max3_f32 v{dst}, v{t}, v{X+15}, v{dst}" if run else f"v_max_f32 v{dst}, v{t}, v{X+15}")
def a4_setm(a):
    t = A4.TMP
    for j in range(2): a(f"v_mov_b32 v{t+j}, v{t+3+j}")
    a("s_nop 0")
    for j in range(2): a(f"v_permlane32_swap_b32 v{t+j}, v{t+3+j}")
    a("s_nop 0")
    for j in range(2): a(f"v_max_f32 v{t+3+j}, v{t+j}, v{t+3+j}")
    a("s_mov_b32 exec_lo, 0")
    for j in range(2):
        a(f"""
        v_sub_f32 v{t}, 0, v{t+3+j}
        v_and_b32 v{t+1}, 0xffff0000, v{t}
        v_sub_f32 v{t}, v{t}, v{t+1}
        v_and_b32 v{t+2}, 0xffff0000, v{t}
        v_sub_f32 v{t}, v{t}, v{t+2}
        v_lshrrev_b32 v{t+1}, 16, v{t+1}
        v_or_b32 v{A4.QT+2*j}, v{t+1}, v{t+2}
        v_lshrrev_b32 v{A4.QT+2*j+1}, 16, v{t}
        """)
    a("s_mov_b64 exec, -1")

def attention(a, L, st):
    A = A4; t = A.TMP; q = AT.LdsQ(a)
    a.label(L('attn'))
    st()
    a(f"v_add_u32 v{t+1}, {KV_A}, v{LANE16}\nv_lshrrev_b32 v{t+2}, 1, v{LANE16}\nv_add_u32 v{t+2}, {KV_A+8192}, v{t+2}")
    if CFG['TAG']:
        for r in range(4): a(f"v_mov_b32 v{A.SY+r}, -1")
        a(f"""
        buffer_store_dwordx4 {vr(A.SY,4)}, v{A.OOFF}, s[4:7], 0 offen{SC}
        s_mov_b32 exec_hi, 0
        buffer_store_dwordx2 {vr(A.SY,2)}, v{A.OTOFF}, s[4:7], 0 offen{SC}
        s_mov_b64 exec, -1
        """)
    for r in range(4): a(f"v_mov_b32 v{A.QT+r}, 0")
    def zero_state():
        for r in range(32): a(f"v_mov_b32 v{A.O+r}, 0")
        for r in range(4): a(f"v_mov_b32 v{A.VF+4+r}, 0")
        a(f"v_add_u32 v{A.AK}, {KV_A}, v{A.LK}\ns_mov_b32 s18, {KV_A}\nv_add_u32 v{A.AV}, {KV_A}, v{A.LV}\nv_mad_u32_u24 v{A.AKT}, v{A.KMASK}, s18, v{A.LKT}")
    zero_state()
    a("s_mov_b32 s20, 0\ns_barrier")
    st()
    a(f"""
    ds_read_b128 {vr(A.QM,4)}, v{t+5}
    ds_read_b128 {vr(A.QM+4,4)}, v{t+7}
    ds_read_b128 {vr(A.P[0],4)}, v{t+1}
    ds_read_b64 {vr(A.P[1],2)}, v{t+2}
    s_mov_b32 exec_hi, 0
    ds_read_b64 {vr(A.QT,2)}, v{t+6}
    ds_read_b64 {vr(A.QT+2,2)}, v{A.XW}
    s_mov_b64 exec, -1
    """)
    a(a4_ka(0)); a(a4_kt(0))
    a(f"""
    s_mul_i32 s24, s14, 3328
    s_xor_b32 s25, s14, 4
    s_mul_i32 s25, s25, 3328
    v_add_u32 v{A.XW}, s24, v{LANE16}
    v_add_u32 v{A.XR}, s25, v{LANE16}
    s_waitcnt lgkmcnt(2)
    """)
    for j in range(2): a(a4_qk(A.SX, j, A.P[0])); a(a4_t(A.SX, j, A.P[1]))
    a("s_nop 9")
    for j in range(2): a4_rowmax(a, A.SX+16*j, t+3+j)
    a4_setm(a)
    a(f"s_branch {L('havem')}")
    a.label(L('restart'))
    zero_state()
    a("s_barrier")
    a(a4_ka(0)); a(a4_kt(0))
    a.label(L('havem'))
    for r in range(4): a(f"v_mov_b32 v{A.P[1]+r}, 0")
    a("s_waitcnt lgkmcnt(0)")
    a(a4_qk(A.SX, 0)); a(a4_qk(A.SX, 1)); q.rd("ka", a4_ka(1)); q.rd("v0", a4_v(0, 0))
    a(a4_t(A.SX, 0)); a(a4_t(A.SX, 1)); q.rd("kt", a4_kt(1))
    a(f"s_mov_b32 s18, {KV_B}\ns_mov_b32 s19, 8\ns_nop 7\ns_branch {L('mid')}")
    state = list(q.q)
    a.label(L('loop'))
    a("s_waitcnt vmcnt(0)\ns_barrier")
    a(f"v_add_u32 v{A.AK}, s18, v{A.LK}\nv_mad_u32_u24 v{A.AKT}, v{A.KMASK}, s18, v{A.LKT}")
    a4_iter(a, q, 0, 0, 2, 3, 3)
    a4_iter(a, q, 1, 1, 3, 0, 2, v_switch=f"v_add_u32 v{A.AV}, s18, v{A.LV}")
    a(f"s_cmp_eq_u32 s18, {KV_B}\ns_cselect_b32 s24, {KV_C}, {KV_A}\ns_cmp_eq_u32 s18, {KV_A}\ns_cselect_b32 s18, {KV_B}, s24")
    a(f"s_sub_u32 s19, s19, 1\ns_cmp_eq_u32 s19, 0\ns_cbranch_scc1 {L('done')}")
    assert q.q == state, (q.q, state)
    a.label(L('mid'))
    a4_iter(a, q, 0, 2, 0, 1, 1)
    a4_iter(a, q, 1, 3, 1, 2, 0)
    assert q.q == state, (q.q, state)
    a(f"s_branch {L('loop')}")
    a.label(L('done'))
    a(a4_pv(3))
    O = A.O
    a("s_nop 11")
    for u in range(3): a(f"ds_write_b128 v{A.XW}, {vr(O+16+4*u,4)} offset:{XCH+1024*u}")
    a(f"v_lshrrev_b32 v{t}, 2, v{LANE16}\nv_sub_u32 v{t+1}, v{A.XW}, v{LANE16}\nv_add_u32 v{t+1}, v{t+1}, v{t}\nv_sub_u32 v{t+2}, v{A.XR}, v{LANE16}\nv_add_u32 v{t+2}, v{t+2}, v{t}")
    a(f"ds_write_b32 v{t+1}, v{O+28} offset:{XCH+3072}")
    a("s_waitcnt lgkmcnt(0)\ns_barrier")
    st()
    for u in range(3): a(f"ds_read_b128 {vr(A.SY+4*u,4)}, v{A.XR} offset:{XCH+1024*u}")
    a(f"ds_read_b32 v{A.SY+12}, v{t+2} offset:{XCH+3072}")
    a(f"s_mov_b32 s24, 0x7b800000        ; 2^120\ns_waitcnt lgkmcnt(0)")
    a(f"v_add_f32 v{O+12}, v{O+12}, v{A.SY+12}")
    for r in range(12): a(f"v_add_f32 v{O+r}, v{O+r}, v{A.SY+r}")
    a(f"v_rcp_f32 v{t}, v{O+12}")
    a(f"v_mul_f32 v{t+1}, 0, v{O}")
    for j in range(1, 12): a(f"v_fmac_f32 v{t+1}, 0, v{O+j}")
    a(f"v_add_f32 v{t+1}, v{t+1}, v{O+12}")
    for j in range(12): a(f"v_mul_f32 v{O+j}, v{O+j}, v{t}")
    a(f"v_cmp_gt_f32 vcc, s24, v{t+1}")
    for j in range(6): a(f"v_cvt_pk_bf16_f32 v{A.SX+j}, v{O+2*j}, v{O+2*j+1}")
    a(f"""
    v_mov_b32 v{t+4}, {VOTE}
    s_cmp_lg_u32 s20, 0
    s_cbranch_scc1 {L('store')}
    s_cmp_eq_u64 vcc, -1
    s_cbranch_scc1 {L('store')}
    v_mov_b32 v{t+5}, 1
    ds_write_b32 v{t+4}, v{t+5}
    s_branch {L('vote')}
    """)
    a.label(L('store'))
    a(f"""
    buffer_store_dwordx4 {vr(A.SX,4)}, v{A.OOFF}, s[4:7], 0 offen{SC}
    s_mov_b32 exec_hi, 0
    buffer_store_dwordx2 {vr(A.SX+4,2)}, v{A.OTOFF}, s[4:7], 0 offen{SC}
    s_mov_b64 exec, -1
    """)
    a.label(L('vote'))
    a(f"""
    s_waitcnt {'' if CFG['TAG'] else 'vmcnt(0) '}lgkmcnt(0)
    s_barrier                              ; BV
    s_cmp_lg_u32 s20, 0
    s_cbranch_scc1 {L('end')}
    ds_read_b32 v{t+5}, v{t+4}
    s_waitcnt lgkmcnt(0)
    v_readfirstlane_b32 s24, v{t+5}
    s_nop 1
    s_cmp_eq_u32 s24, 0
    s_cbranch_scc1 {L('end')}
    s_mov_b32 s20, 1
    s_mov_b32 s19, 8
    v_mov_b32 v{t+3}, 0xff800000
    v_mov_b32 v{t+4}, 0xff800000
    v_add_u32 v{A.AK}, {KV_B}, v{LANE16}
    v_lshrrev_b32 v{A.AKT}, 1, v{LANE16}
    v_add_u32 v{A.AKT}, {KV_B+8192}, v{A.AKT}
    s_mov_b32 exec_lo, 0
    """)
    for r in range(4): a(f"v_mov_b32 v{A.QT+r}, 0")
    a("s_mov_b64 exec, -1")
    a.label(L('maxloop'))
    a("s_barrier\ns_barrier\ns_mov_b32 s24, 8")
    a.label(L('maxblk'))
    a(a4_ka(0)); a(a4_kt(0)); a(f"v_add_u32 v{A.AK}, 1024, v{A.AK}\nv_add_u32 v{A.AKT}, 256, v{A.AKT}\ns_waitcnt lgkmcnt(0)")
    for j in range(2): a(a4_qk(A.SX, j))
    for j in range(2): a(a4_t(A.SX, j))
    a("s_nop 11")
    for j in range(2): a4_rowmax(a, A.SX+16*j, t+3+j, run=True)
    a(f"s_sub_u32 s24, s24, 1\ns_cmp_lg_u32 s24, 0\ns_cbranch_scc1 {L('maxblk')}")
    a(f"v_subrev_u32 v{A.AK}, 8192, v{A.AK}\nv_subrev_u32 v{A.AKT}, 2048, v{A.AKT}")
    a(f"s_sub_u32 s19, s19, 1\ns_cmp_lg_u32 s19, 0\ns_cbranch_scc1 {L('maxloop')}")
    a4_setm(a)
    a(f"s_barrier\ns_branch {L('restart')}")

def a_waves(a, L, st):
    t = AT.TMP
    a(f"""
    s_waitcnt lgkmcnt(0)
    s_load_dwordx4 s[44:47], s[0:1], 0
    s_load_dwordx2 s[4:5], s[0:1], 80
    s_load_dwordx2 s[8:9], s[0:1], 40
    s_load_dwordx2 s[52:53], s[0:1], 32
    s_load_dwordx2 s[56:57], s[0:1], 48
    s_load_dwordx2 s[60:61], s[0:1], 16
    s_and_b32 s15, s14, 3                 ; tb
    s_lshr_b32 s16, s14, 2                ; 0 / 1
    s_lshr_b32 s37, s2, 3
    s_lshl_b32 s37, s37, 3
    s_add_u32 s37, s37, s14
    v_and_b32 v{T+23}, 63, v0             ; lane
    """)
    lane = T+23
    if CFG['GPF']:
        a(f"""
        s_lshl_b32 s38, s2, 3
        s_add_u32 s38, s38, s14
        s_mul_i32 s39, s38, 400
        s_mul_i32 s38, s38, 960
        v_lshlrev_b32 v{PFD+4}, 4, v{lane}
        s_waitcnt lgkmcnt(0)
        """)
        srd(a, 52, 1966080); srd(a, 56, 1966080); srd(a, 60, 819200)
    if CFG['PF']:
        a("s_and_b32 s38, s2, 1\ns_mul_i32 s38, s38, 1310720\ns_bfe_u32 s39, s2, 0x20001\ns_mul_i32 s39, s39, 960")
        pf_addr(a, PFD, lane, 10, 1024, 0, 1280, 38, 640)
        pf_addr(a, PFD+1, lane, 15, 320, 320, 3840, 39, 0)
        a("s_waitcnt lgkmcnt(0)\ns_mov_b32 s48, s46\ns_mov_b32 s49, s47")
        srd(a, 44, 2621440); srd(a, 48, 2457600)
        pf1 = f"buffer_load_dword v{PFD}, v{PFD}, s[44:47], 0 offen\nbuffer_load_dword v{PFD+1}, v{PFD+1}, s[48:51], 0 offen"
        if CFG['PFAT'] == 0: a(pf1)
    if CFG['PF2'] or CFG['PF3']:
        a("s_waitcnt lgkmcnt(0)")
        a("s_bfe_u32 s39, s2, 0x20001\ns_mul_i32 s39, s39, 768\ns_bfe_u32 s38, s2, 0x10002\ns_mul_i32 s38, s38, 640")
        pf_addr(a, PFD+2, lane, 12, 640, 0, 3072, 39, 0)
        pf_addr(a, PFD+3, lane, 10, 1536, 0, 1280, 38, 0)
        pf_addr(a, PFD+4, lane, 10, 640, 0, 1280, 38, 0)
        srd(a, 52, 1966080); srd(a, 56, 1966080); srd(a, 60, 819200)
    a(f"""
    v_mov_b32 v{T}, v{lane}
    v_and_b32 v{T+1}, 31, v{T}            ; t
    v_lshrrev_b32 v{T+2}, 5, v{T}         ; h
    v_lshlrev_b32 v{LANE16}, 4, v{T}
    v_lshlrev_b32 v{VADDRV}, 5, v{T+1}
    v_lshl_add_u32 v{VADDRV}, v{T+2}, 4, v{VADDRV}
    v_bfe_u32 v{T+3}, v{T+1}, 1, 3
    v_xor_b32 v{T+3}, v{T+3}, v{T+2}
    v_lshlrev_b32 v{T+3}, 4, v{T+3}
    v_lshl_add_u32 v{LX}, v{T+1}, 7, v{T+3}
    s_lshl_b32 s17, s15, 12
    v_add_u32 v{LX}, s17, v{LX}
    v_bfe_u32 v{T+3}, v{T}, 2, 2          ; r
    v_lshl_add_u32 v{T+4}, v{T+2}, 3, v{T+3}      ; krow = 8h + r
    v_bfe_u32 v{T+5}, v{T}, 4, 1
    v_and_b32 v{T+6}, 3, v{T}             ; c
    v_and_b32 v{T+7}, 1, v{T}
    v_lshlrev_b32 v{T+7}, 1, v{T+7}
    v_bfe_u32 v{T+8}, v{T}, 1, 1
    v_add_u32 v{T+7}, v{T+7}, v{T+8}      ; perm[c]
    v_lshlrev_b32 v{T+11}, 3, v{T+7}
    v_lshlrev_b32 v{T+5}, 5, v{T+5}
    v_lshl_add_u32 v{T+7}, v{T+7}, 3, v{T+5}
    v_min_u32 v{T+12}, 1, v{T+6}
    v_lshl_add_u32 v{T+6}, v{T+6}, 3, v{T+5}      ; half*32 + c*8
    v_lshlrev_b32 v{T+8}, 8, v{T+4}
    v_add_u32 v{T+8}, 16384, v{T+8}
    s_lshl_b32 s17, s16, 1
    v_xor_b32 v{T+9}, s17, v{T+3}
    v_lshl_add_u32 v{LW}, v{T+9}, 6, v{T+8}
    v_xor_b32 v{T+9}, 1, v{T+9}
    v_lshl_add_u32 v{LW+1}, v{T+9}, 6, v{T+8}
    v_add_u32 v{LW}, v{LW}, v{T+7}
    s_cmp_eq_u32 s16, 0
    s_cselect_b64 vcc, -1, 0
    v_mul_u32_u24 v{T+10}, 192, v{T+4}
    v_cndmask_b32 v{T+6}, v{T+6}, v{T+7}, vcc
    v_add_u32 v{LW+1}, v{LW+1}, v{T+6}
    s_lshl_b32 s17, s16, 7
    s_add_u32 s17, s17, 16384
    v_add3_u32 v{LW+2}, v{T+10}, v{T+7}, s17      ; P2 address
    s_lshl_b32 s24, s16, 12
    v_add_u32 v{A4.LK}, s24, v{LANE16}
    s_lshl_b32 s24, s16, 10
    s_add_u32 s24, s24, 8192
    v_lshl_add_u32 v{A4.LKT}, v{T}, 3, s24
    v_mov_b32 v{T+14}, {CONST_LDS}
    v_cmp_eq_u32 vcc, 0, v{T+2}
    v_lshl_add_u32 v{T+13}, v{T+2}, 2, v{T+3}     ; 4h + r
    v_mul_u32_u24 v{T+13}, 48, v{T+13}
    v_cndmask_b32 v{A4.LKT}, v{T+14}, v{A4.LKT}, vcc
    v_xor_b32 v{A4.KMASK}, 1, v{T+2}
    v_lshl_add_u32 v{T+12}, v{T+12}, 3, 32
    v_cmp_eq_u32 vcc, 0, v{T+5}
    s_and_b32 s40, s2, 7
    s_lshl_b32 s40, s40, 2
    s_bfe_u32 s41, s2, 0x20003
    v_cndmask_b32 v{T+11}, v{T+12}, v{T+11}, vcc
    s_add_u32 s40, s40, s41               ; head
    s_lshr_b32 s41, s2, 5
    s_mul_i32 s24, s16, 6144
    s_add_u32 s24, s24, 10240
    v_add3_u32 v{A4.LV}, v{T+13}, v{T+11}, s24
    s_lshl_b32 s26, s15, 1
    s_add_u32 s26, s26, s16
    s_lshl_b32 s25, s41, 3
    s_add_u32 s25, s25, s26
    s_mul_i32 s29, s25, 40960
    s_add_u32 s29, s29, {O_OFF}
    s_lshl_b32 s30, s40, 10
    s_add_u32 s30, s30, s29
    v_add_u32 v{A4.OOFF}, s30, v{LANE16}
    s_lshl_b32 s30, s40, 8
    s_add_u32 s30, s30, s29
    s_add_u32 s30, s30, 32768
    v_lshl_add_u32 v{A4.OTOFF}, v{T+1}, 3, s30
    s_lshl_b32 s30, s26, 10
    s_add_u32 s30, s30, {QM_LDS}
    v_add_u32 v{t+5}, s30, v{LANE16}
    s_xor_b32 s27, s26, 1
    s_lshl_b32 s30, s27, 10
    s_add_u32 s30, s30, {QM_LDS}
    v_add_u32 v{t+7}, s30, v{LANE16}
    s_lshl_b32 s30, s26, 8
    s_add_u32 s30, s30, {QT_LDS}
    v_lshl_add_u32 v{t+6}, v{T+1}, 3, s30
    s_lshl_b32 s30, s27, 8
    s_add_u32 s30, s30, {QT_LDS}
    v_lshl_add_u32 v{A4.XW}, v{T+1}, 3, s30
    s_lshl_b32 s23, s12, 2
    s_add_u32 s23, s23, s15               ; TB
    s_lshl_b32 s28, s23, 10
    s_add_u32 s28, s28, {QM_OFF}
    s_lshr_b32 s29, s23, 3
    s_mul_i32 s29, s29, {CHUNK}
    s_add_u32 s29, s29, {KV_OFF}
    s_and_b32 s34, s23, 7
    s_lshl_b32 s31, s34, 10
    s_add_u32 s32, s31, 10240
    s_lshl_b32 s42, s34, 9
    s_add_u32 s42, s42, 18432
    s_lshl_b32 s34, s34, 8
    s_add_u32 s34, s34, 8192
    s_lshl_b32 s33, s23, 8
    s_add_u32 s33, s33, {QT_OFF}
    s_mov_b32 s30, {fbits(QSCALE)}
    s_mov_b32 s35, {fbits(40.0)}
    s_mul_i32 s36, s13, 192
    s_lshl_b32 s17, s16, 7
    s_add_u32 s36, s36, s17
    v_lshlrev_b32 v{T+2}, 4, v{T+2}
    s_mov_b32 s18, 0
    s_waitcnt lgkmcnt(0)
    """)
    srd(a, 4, WS_USED); srd(a, 8, 3072)
    assert not (CFG['PF'] and CFG['PFAT'])
    a(f"s_mov_b32 s44, {fbits(1.4426950408889634)}\ns_mov_b32 s45, s44\ns_mov_b32 s46, 2.0\ns_mov_b32 s47, 2.0")
    a(f"v_mov_b32 v{PFD+5}, v{T+2}\nbuffer_load_dword v{PFD+6}, v{T+2}, s[8:11], s36 offen")
    biasld = "\n".join(f"buffer_load_dwordx4 {vr(BIAS+4*u,4)}, v{PFD+5}, s[8:11], s36 offen offset:{32*u}" for u in range(4))
    npo = 0
    for r in range(32): a(f"v_mov_b32 v{r}, 0")
    hooks1 = {CFG['PF2AT']: f"buffer_load_dword v{PFD+2}, v{PFD+2}, s[52:55], 0 offen"} if CFG['PF2'] else {}
    if CFG['PF'] and CFG['PFAT']: hooks1[CFG['PFAT']] = pf1
    if CFG['GPF']:
        for k, (r, so) in zip((CFG['G1'], CFG['G2'], CFG['G3']), ((52, 38), (56, 38), (60, 39))):
            if k: hooks1[k] = hooks1.get(k, "") + f"\nbuffer_load_dwordx4 {vr(PFD,4)}, v{PFD+4}, s[{r}:{r+3}], s{so} offen"
    if CFG['ATS'] == 1 and st.on:
        for m in (5, 6, 7, 8):
            r = st.base + 4*st.n; st.n += 1
            hooks1[m] = hooks1.get(m, "") + f"\ns_memtime s[{r}:{r+1}]\ns_memrealtime s[{r+2}:{r+3}]"
        st.on = False
    od = (lambda k: CFG[k]) if CFG['STAG'] else (lambda k: None)
    n0 = st.n
    hooks2 = {CFG['NF1']-10: "s_waitcnt vmcnt(0)"}
    if CFG['PF3']:
        k3 = CFG['PF3AT'] or CFG['NF1']-10
        hooks2[k3] = hooks2.get(k3, "") + f"\nbuffer_load_dword v{PFD+3}, v{PFD+3}, s[56:59], 0 offen\nbuffer_load_dword v{PFD+4}, v{PFD+4}, s[60:63], 0 offen"
    a(f"s_cmp_lg_u32 s16, 0\ns_cbranch_scc1 {L('hi')}")
    kloop(a, L, "p1lo", 2, 256, hooks1, last=biasld, order=od('O1L'))
    st()
    a("s_nop 7")
    main_tile_store(a, L, "a", 0, 0)
    main_tile_store(a, L, "b", 1, 1)
    a(f"v_mov_b32 v{LW}, v{LW+2}\ns_waitcnt vmcnt({4+npo})")
    bias_init(a, 0); bias_init(a, 1)
    kloop(a, L, "p2lo", 2, 192, hooks2, order=od('O2L'))
    st()
    a(f"s_mul_i32 s21, s23, 98304\ns_mul_i32 s22, s13, 6144\ns_add_u32 s21, s21, s22\ns_add_u32 s21, s21, {H_OFF}\ns_waitcnt vmcnt(0)\ns_nop 6")
    for tt in range(2):
        mish(a, ACC[tt], HOUT+8*tt)
        for u in range(2): a(f"buffer_store_dwordx4 {vr(HOUT+8*tt+4*u,4)}, v{LANE16}, s[4:7], s21 offen offset:{2048*tt+1024*u}{SC}")
    a(f"s_branch {L('attn')}")
    a.label(L('hi'))
    kloop(a, L, "p1hi", 2, 256, hooks1, last=biasld, order=od('O1H'))
    st.n = n0; st()
    a("s_nop 7")
    main_tile_store(a, L, "c", 0, 2)
    tail_tile_store(a, L)
    a(f"v_mov_b32 v{LW}, v{LW+2}\ns_waitcnt vmcnt({5+npo})")
    bias_init(a, 0)
    kloop(a, L, "p2hi", 1, 192, hooks2, order=od('O2H'))
    st()
    a(f"s_mul_i32 s21, s23, 98304\ns_mul_i32 s22, s13, 6144\ns_add_u32 s21, s21, s22\ns_add_u32 s21, s21, {H_OFF+4096}\ns_waitcnt vmcnt(0)\ns_nop 6")
    mish(a, ACC[0], HOUT)
    for u in range(2): a(f"buffer_store_dwordx4 {vr(HOUT+4*u,4)}, v{LANE16}, s[4:7], s21 offen offset:{1024*u}{SC}")
    attention(a, L, st)

VX, VW, VW1 = 10, 14, 18
LANE = 167
FPOLL = 159

def f_stage(a, vq, n):
    slot = (n % NSL) * SLOT
    a(f"s_add_u32 m0, s18, {slot}\ns_mul_i32 s20, s92, {1920 if n < 10 else 1536}")
    for j in range(4): vq(f"st{n}", f"buffer_load_dwordx4 v{VX+j}, s[4:7], s92 offen offset:{1024*j} lds")
    if n < 10:
        a(f"s_add_u32 m0, s18, {slot+16384}\ns_add_u32 s92, s92, 128")
        for j in range(4): vq(f"st{n}", f"buffer_load_dwordx4 v{VW+j}, s[8:11], s20 offen offset:{1024*j} lds")
    else:
        a(f"s_add_u32 m0, s19, {slot+16384}\ns_add_u32 s92, s92, 128")
        for j in range(3): vq(f"st{n}", f"buffer_load_dwordx4 v{VW1+j}, s[24:27], s20 offen offset:{1024*j} lds")
    a("s_cmp_eq_u32 s92, 1280\ns_cselect_b32 s92, 0, s92")

VV = fw.VD + 6
def kv_dma(a, vq, tag, slot, chunk):
    if chunk is not None: a(f"s_mov_b32 s15, {chunk*CHUNK}")
    a(f"s_add_u32 m0, s17, {slot}\ns_sub_u32 s21, s90, s17")
    for j in range(2): vq(tag, f"buffer_load_dwordx4 v{fw.VKV}, s[28:31], s15 offen offset:{1024*j}{SC} lds")
    a(f"s_add_u32 m0, s91, {slot}\ns_add_u32 s21, s21, s15")
    for j in range(3): vq(tag, f"buffer_load_dwordx4 v{VV+j}, s[28:31], s15 offen offset:{1024*j}{SC} lds")
    a(f"s_add_u32 m0, s90, {slot}\ns_mov_b32 exec_hi, 0")
    vq(tag, f"buffer_load_dwordx4 v{fw.VKV}, s[28:31], s21 offen{SC} lds")
    a("s_mov_b64 exec, -1")

def poll(a, vq, L, tag, addr, soff='0', cmp='v_cmp_ne_u32 vcc, s60,'):
    a(f"s_mov_b32 s3, {CFG['SPIN']}")
    a.label(L(tag))
    a(f"""
    buffer_load_dword v{FPOLL}, v{addr}, s[56:59], {soff} offen{SC}
    s_sub_u32 s3, s3, 1
    s_cmp_eq_u32 s3, 0
    s_cbranch_scc1 {L(tag+'_ok')}
    s_waitcnt vmcnt(0)
    {cmp} v{FPOLL}
    s_nop 4
    s_cbranch_vccz {L(tag+'_ok')}
    s_sleep 1
    s_branch {L(tag)}
    """)
    a.label(L(tag+'_ok'))
    vq.q = []

def publish(a, vq, L, tag, soff):
    a(f"""
    s_cmp_lg_u32 s61, 0
    s_cbranch_scc1 {L(tag)}
    v_mov_b32 v{FPOLL-1}, s{soff}
    v_mov_b32 v{FPOLL-2}, s60
    s_mov_b64 exec, 1
    buffer_store_dword v{FPOLL-2}, v{FPOLL-1}, s[56:59], 0 offen{SC}
    s_mov_b64 exec, -1
    s_branch {L(tag+'_d')}
    """)
    a.label(L(tag))
    a(f"buffer_load_dword v{FPOLL-2}, off, s[44:47], 0")
    a.label(L(tag+'_d'))
    vq.q.append("pub")

def gemm(a, acc, bregs, offs, side=None, pre=None):
    n = len(bregs); side = side or []
    per = -(-len(side) // n)
    def reads(i):
        o = offs[i]() if callable(offs[i]) else offs[i]
        return [fw.rd_a(i & 1, u, o) for u in range(5)]
    for r in reads(0):
        for t in r: a(t)
    for i in range(n):
        if pre: pre(i)
        nxt = reads(i+1) if i+1 < n else None
        for u in range(5):
            if u in (0, 2, 4):
                left = 2*(5 - min(u+2, 5))
                a(f"s_waitcnt lgkmcnt({left + (2*u if nxt else 0)})")
            a(f"v_mfma_f32_16x16x32_bf16 {vr(acc+4*u,4)}, {vr(fw.AF[i&1]+4*u,4)}, {vr(bregs[i],4)}, {vr(acc+4*u,4)}")
            if nxt:
                for t in nxt[u]: a(t)
        for f in side[i*per:(i+1)*per]: f()

def f_waves(a, L, st):
    vq = VmQ(a)
    if CFG['CODEPF']: vq.q.append("code")
    a(f"""
    s_load_dwordx2 s[24:25], s[0:1], 32
    s_load_dwordx4 s[52:55], s[0:1], 72
    s_load_dwordx4 s[36:39], s[0:1], 48
    s_load_dwordx2 s[48:49], s[0:1], 16
    s_load_dwordx2 s[32:33], s[0:1], 64
    s_setprio 3
    s_sub_u32 s61, s14, 8                 ; f
    v_and_b32 v{LANE}, 63, v0
    v_lshrrev_b32 v2, 3, v{LANE}
    v_lshrrev_b32 v3, 4, v{LANE}
    v_and_b32 v4, 7, v{LANE}
    s_lshl_b32 s16, s61, 5
    v_add_u32 v2, s16, v2
    v_mul_u32_u24 v2, 1280, v2
    v_xor_b32 v5, v4, v3
    v_lshl_add_u32 v10, v5, 4, v2
    v_xor_b32 v5, 4, v5
    v_lshl_add_u32 v11, v5, 4, v2
    v_add_u32 v11, 9216, v11
    v_add_u32 v12, 18432, v10
    v_add_u32 v13, 18432, v11
    v_bfe_u32 v4, v{LANE}, 2, 2
    v_xor_b32 v4, v4, v3
    v_and_b32 v5, 3, v{LANE}
    v_lshlrev_b32 v6, 4, v5
    v_lshrrev_b32 v7, 1, v5
    v_lshl_add_u32 v6, v7, 4, v6
    v_mul_u32_u24 v7, 80, v4
    v_add_u32 v6, v6, v7
    v_min_u32 v7, 2, v5
    v_mul_u32_u24 v7, 80, v7
    v_add_u32 v7, 32, v7
    v_cmp_eq_u32 vcc, 3, v4
    s_lshl_b32 s16, s61, 4
    v_add_u32 v8, s16, v3
    v_cndmask_b32 v6, v6, v7, vcc
    v_mul_u32_u24 v8, 3840, v8
    s_mul_i32 s17, s13, 240
    v_add3_u32 v14, v8, v6, s17
    v_add_u32 v15, 14336, v14
    v_add_u32 v16, 14336, v15
    v_add_u32 v17, 14336, v16
    s_lshl_b32 s18, s61, 12
    s_mul_i32 s19, s61, 3072
    s_mul_i32 s16, s12, 163840
    s_lshr_b32 s92, s2, 6
    s_mul_i32 s92, s92, 5
    s_add_u32 s92, s92, 1
    s_lshr_b32 s92, s92, 1
    s_mul_i32 s92, s92, {CFG['RG']}
    s_bfe_u32 s3, s2, 0x30003
    s_and_b32 s3, s3, {CFG['RM']}
    s_mul_i32 s3, s3, {CFG['RR']}
    s_add_u32 s92, s92, s3
    s_and_b32 s3, s2, 1
    s_mul_i32 s3, s3, {CFG['RA']}
    s_add_u32 s92, s92, s3
    s_bfe_u32 s3, s2, 0x20001
    s_mul_i32 s3, s3, {CFG['RB']}
    s_lshr_b32 s3, s3, 1
    s_add_u32 s92, s92, s3
    s_mul_i32 s3, s92, 205
    s_lshr_b32 s3, s3, 11
    s_mul_i32 s3, s3, 10
    s_sub_u32 s92, s92, s3                ; mod 10
    s_mul_i32 s92, s92, {128*min(CFG['ROT'], 1)}
    s_waitcnt lgkmcnt(0)
    s_mov_b32 s8, s6
    s_mov_b32 s9, s7
    s_mov_b32 s40, s4
    s_mov_b32 s41, s5
    s_add_u32 s4, s4, s16
    s_addc_u32 s5, s5, 0
    """)
    srd(a, 4, 163840); srd(a, 8, 2457600)
    for n in range(min(3, CFG['INIT'])): f_stage(a, vq, n)
    a("s_mov_b32 s44, s38\ns_mov_b32 s45, s39\ns_mov_b32 s56, s54\ns_mov_b32 s57, s55")
    srd(a, 24, 1966080); srd(a, 36, 1966080); srd(a, 40, 2621440); srd(a, 44, 1280); srd(a, 48, 819200)
    srd(a, 52, 256); srd(a, 56, WS_USED); srd(a, 32, 2621440)
    a(f"""
    s_add_u32 s3, s2, s61
    s_cmp_lg_u32 s3, 0
    s_cbranch_scc1 {L('notok')}
    s_mov_b32 s3, {TOK_OFF}
    s_load_dword s62, s[56:57], s3
    s_waitcnt lgkmcnt(0)
    s_mul_i32 s62, s62, 0x9e3779b1
    s_add_u32 s62, s62, 0x7f4a7c15
    s_cmp_eq_u32 s62, 0
    s_cselect_b32 s62, 1, s62
    v_mov_b32 v2, s62
    v_mov_b32 v3, {TOK_OFF}
    v_mov_b32 v4, 0
    s_mov_b64 exec, 1
    buffer_store_dword v2, v4, s[52:55], 0 offen{SC}
    buffer_store_dword v2, v3, s[56:59], 0 offen{SC}
    s_mov_b64 exec, -1
    s_branch {L('tokd')}
    """)
    a.label(L('notok'))
    a("buffer_load_dword v2, off, s[44:47], 0\nbuffer_load_dword v3, off, s[44:47], 0")
    a.label(L('tokd'))
    vq.q += ["pub", "pub"]
    for n in range(3, CFG['INIT']): f_stage(a, vq, n)
    a("s_mul_i32 s17, s13, 192\ns_mul_i32 s16, s61, 49152\ns_add_u32 s17, s17, s16\ns_mov_b32 s16, 0x15555556")
    for j in range(3):
        a(f"""
        v_add_u32 v22, {64*j}, v{LANE}
        v_mul_hi_u32 v23, v22, s16
        v_mul_u32_u24 v24, 12, v23
        v_sub_u32 v22, v22, v24
        v_mul_u32_u24 v23, 3072, v23
        v_lshl_add_u32 v22, v22, 4, v23
        v_add_u32 v{VW1+j}, s17, v22
        """)
        if j: a(f"v_subrev_u32 v{VW1+j}, {1024*j}, v{VW1+j}")
    free = 1 if CFG['FREE_EARLY'] else 2
    issued = CFG['INIT']
    for n in range(20):
        vq.wait(f"st{n}")
        if st.on == 4 and n in CFG['TSN']: st()
        a("s_barrier")
        if st.on == 4 and n in CFG['TSN']: st()
        if st.on == 2 and n in (0, 3, 6, 9, 10, 14): st()
        for _ in range(CFG['CATCH']):
            if issued < 20 and issued <= n - free + NSL:
                f_stage(a, vq, issued); issued += 1
        if st.on == 4 and n in CFG['TSN']: st()
        if n == 0:
            fw.tile_coords(a, 62, 63)
            a(f"""
            s_and_b32 s22, s2, 7
            s_lshl_b32 s22, s22, 2
            s_bfe_u32 s23, s2, 0x20003
            s_add_u32 s22, s22, s23               ; head
            s_lshr_b32 s23, s2, 5                 ; qb
            s_mul_i32 s3, s22, {KV_HEAD}
            s_add_u32 s3, s3, {KV_OFF}
            s_add_u32 s28, s56, s3
            s_addc_u32 s29, s57, 0
            s_lshl_b32 s17, s61, 11
            v_lshl_add_u32 v{fw.VKV}, v{LANE}, 4, s17
            s_mov_b32 s94, 160
            s_mov_b32 s3, 0x55555556
            s_lshl_b32 s16, s61, 6
            s_lshl_b32 s90, s61, 9
            s_add_u32 s90, s90, 8192
            s_mul_i32 s91, s61, 3072
            s_add_u32 s91, s91, 10240
            """)
            for j in range(3):
                a(f"""
                v_add_u32 v22, {64*j}, v{LANE}
                v_mul_hi_u32 v23, v22, s3
                v_mul_u32_u24 v24, 3, v23
                v_sub_u32 v22, v22, v24               ; part
                v_add_u32 v23, s16, v23               ; key
                v_lshlrev_b32 v24, 5, v23
                v_lshl_add_u32 v24, v22, 4, v24
                v_add_u32 v24, {10240 - 1024*j}, v24
                v_lshlrev_b32 v23, 4, v23
                v_cmp_eq_u32 vcc, 2, v22
                v_add_u32 v23, {18432 - 1024*j}, v23
                s_nop 0
                v_cndmask_b32 v{VV+j}, v24, v23, vcc
                """)
            srd(a, 28, KV_HEAD)
            fw.lane_setup(a, LANE, 61, WBUF)
            fw.dma_offsets(a, LANE, fw.VD, "w2", 63)
        if n == 1:
            a(f"""
            s_lshr_b32 s3, s22, 1
            s_add_u32 s16, s3, 16
            s_mul_hi_u32 s16, s16, 0x55555556
            s_add_u32 s21, s3, 32
            s_mul_hi_u32 s21, s21, 0x55555556
            s_mul_hi_u32 s3, s3, 0x55555556
            v_and_b32 v22, 15, v{LANE}
            v_lshlrev_b32 v22, 2, v22
            v_and_b32 v23, 1, v{LANE}
            v_lshlrev_b32 v23, 2, v23
            s_lshl_b32 s3, s3, 8
            s_lshl_b32 s95, s23, 3
            s_add_u32 s3, s3, s95
            v_add_u32 v23, s3, v23
            s_lshl_b32 s16, s16, 8
            s_lshl_b32 s21, s21, 8
            v_add_u32 v24, s16, v22
            v_add_u32 v25, s21, v22
            v_cmp_gt_u32 vcc, 16, v{LANE}
            s_lshr_b32 s3, s62, 1
            s_lshl_b32 s3, s3, 8
            v_cndmask_b32 v25, v25, v24, vcc
            v_cmp_gt_u32 vcc, 32, v{LANE}
            s_add_u32 s3, s3, {F2_OFF}
            v_add_u32 v26, s3, v22
            v_cndmask_b32 v25, v23, v25, vcc
            v_add_u32 v25, {F1_OFF}, v25
            v_and_b32 v22, 31, v{LANE}
            s_lshr_b32 s3, s62, 2
            s_lshl_b32 s3, s3, 8
            s_add_u32 s3, s3, {F3_OFF}
            v_lshl_add_u32 v27, v22, 2, s3
            s_nop 0
            v_cndmask_b32 v31, v27, v26, vcc
            s_lshl_b32 s3, s22, 6
            s_lshl_b32 s16, s23, 3
            s_add_u32 s3, s3, s16
            s_lshl_b32 s16, s61, 1
            s_add_u32 s3, s3, s16
            s_lshl_b32 s16, s3, 10
            s_add_u32 s16, s16, {QM_OFF}
            v_lshl_add_u32 v28, v{LANE}, 4, s16
            s_lshl_b32 s16, s3, 8
            s_add_u32 s16, s16, {QT_OFF}
            v_lshl_add_u32 v29, v{LANE}, 4, s16
            """)
        if n == CFG['NTOK']:
            vq("tok", f"buffer_load_dword v30, off, s[52:55], 0{SC}")
        if n == CFG['NTOK'] + NSL + 1:
            assert "tok" not in vq.q
            a(f"v_readfirstlane_b32 s60, v30\ns_mov_b32 s3, {CFG['SPIN']}\ns_nop 1\ns_cmp_lg_u32 s60, 0\ns_cbranch_scc1 {L('tok_ok')}")
            a.label(L('tok'))
            a(f"""
            buffer_load_dword v30, off, s[52:55], 0{SC}
            s_sub_u32 s3, s3, 1
            s_cmp_eq_u32 s3, 0
            s_cbranch_scc1 {L('tok_ok')}
            s_waitcnt vmcnt(0)
            v_readfirstlane_b32 s60, v30
            s_nop 1
            s_cmp_eq_u32 s60, 0
            s_cbranch_scc1 {L('tok')}
            """)
            a.label(L('tok_ok'))
        if n == 12:
            a(f"v_mov_b32 v22, {VOTE}\nv_mov_b32 v23, 0\nds_write_b32 v22, v23\nv_and_b32 v22, 3, v{LANE}\nv_lshlrev_b32 v22, 8, v22\nv_add_u32 v22, {CONST_LDS}, v22\nv_mov_b32 v24, 0x3f803f80\nv_mov_b32 v23, 0x3f80\nds_write_b32 v22, v24\nds_write_b32 v22, v23 offset:4\ns_waitcnt lgkmcnt(0)")
        if n == CFG['NF1']:
            a(f"s_lshl_b32 s16, s13, 8\ns_lshl_b32 s3, s12, 2\ns_add_u32 s16, s16, s3\ns_add_u32 s16, s16, {F1_OFF}")
            publish(a, vq, L, "pub1", 16)
        if n == CFG['NPOLL']:
            poll(a, vq, L, "poll1", 25)
            if st.on == 2: st()
            kv_dma(a, vq, "kv0", KV_A, 0)
            a(f"s_lshl_b32 s3, s61, 11\ns_add_u32 m0, s3, {QM_LDS}\ns_nop 0")
            vq("kv0", f"buffer_load_dwordx4 v28, s[56:59], 0 offen{SC} lds")
            vq("kv0", f"buffer_load_dwordx4 v28, s[56:59], 0 offen offset:1024{SC} lds")
            a(f"s_lshl_b32 s3, s61, 9\ns_add_u32 m0, s3, {QT_LDS}\ns_mov_b32 exec_hi, 0")
            vq("kv0", f"buffer_load_dwordx4 v29, s[56:59], 0 offen{SC} lds")
            a("s_mov_b64 exec, -1")
        if n == max(CFG['NPOLL'], 17): kv_dma(a, vq, "kv1", KV_B, 1)
        if n == max(CFG['NPOLL'], 18): kv_dma(a, vq, "kv2", KV_C, 2)
    a(f"""
    v_mov_b32 v{fw.FT+2}, v{31 if CFG['TAG'] else 26}
    v_mov_b32 v{fw.VD+5}, v27
    s_lshl_b32 s18, s62, 6
    s_lshl_b32 s19, s61, 4
    s_add_u32 s18, s18, s19               ; first token of this wave
    s_lshr_b32 s13, s18, 5
    s_mul_i32 s4, s13, 98304
    s_add_u32 s4, s4, {H_OFF}
    s_mul_i32 s5, s13, 40960
    s_add_u32 s5, s5, {O_OFF}
    s_mul_i32 s6, s61, {2*fw.STEP}
    s_mul_i32 s7, s61, {64*1280}
    s_lshl_b32 s8, s12, 8
    s_add_u32 s8, s8, {F2_OFF}
    s_lshr_b32 s3, s2, 6
    s_bfe_u32 s9, s2, 0x20001
    s_lshl_b32 s9, s9, 2
    s_add_u32 s9, s9, s3
    s_lshl_b32 s9, s9, 2
    s_add_u32 s8, s8, s9
    s_lshl_b32 s9, s23, 8
    s_lshl_b32 s3, s22, 2
    s_add_u32 s9, s9, s3
    s_add_u32 s9, s9, {F3_OFF}
    """)
    F2A, F3A = fw.FT+2, fw.VD+5
    g = fw.FT
    XR = [80+4*i for i in range(10)], [120+4*i for i in range(6)] + [20+4*i for i in range(4)]
    def gate():
        a(f"""
        v_lshrrev_b32 v{g}, 3, v{LANE}
        v_and_b32 v{g+1}, 7, v{LANE}
        v_lshlrev_b32 v{g+1}, 4, v{g+1}
        v_mul_u32_u24 v{g}, 1280, v{g}
        v_add_u32 v{g}, v{g}, v{g+1}
        s_mul_i32 s10, s18, 1280
        s_add_u32 s3, s10, {8*1280}
        """)
        for i in range(10):
            vq("g0", f"buffer_load_dwordx4 {vr(40+4*i,4)}, v{g+1}, s[44:47], 0 offen offset:{128*i}")
            vq("g0", f"buffer_load_dwordx4 {vr(XR[0][i],4)}, v{g}, s[40:43], s10 offen offset:{128*i}")
        for i in range(10): vq("g1", f"buffer_load_dwordx4 {vr(XR[1][i],4)}, v{g}, s[40:43], s3 offen offset:{128*i}")
    def gate_math():
        for r in range(4): a(f"v_mov_b32 v{36+r}, 0")
        for grp in range(2):
            vq.wait(f"g{grp}")
            for i in range(10):
                for r in range(4): a(f"v_dot2_f32_bf16 v{36+2*grp+(r&1)}, v{XR[grp][i]+r}, v{40+4*i+r}, v{36+2*grp+(r&1)}")
        a(f"""
        v_and_b32 v{g}, 1, v{LANE}
        v_cmp_eq_u32 vcc, 1, v{g}
        v_add_f32 v36, v36, v37
        v_add_f32 v38, v38, v39
        v_and_b32 v{g}, 7, v{LANE}
        v_bfe_u32 v{g+1}, v{LANE}, 3, 1
        v_add_f32_dpp v36, v36, v36 quad_perm:[1,0,3,2] row_mask:0xf bank_mask:0xf
        v_add_f32_dpp v38, v38, v38 quad_perm:[1,0,3,2] row_mask:0xf bank_mask:0xf
        v_lshl_add_u32 v{g}, v{g}, 3, v{g+1}
        v_add_f32_dpp v36, v36, v36 quad_perm:[2,3,0,1] row_mask:0xf bank_mask:0xf
        v_add_f32_dpp v38, v38, v38 quad_perm:[2,3,0,1] row_mask:0xf bank_mask:0xf
        v_lshlrev_b32 v{g}, 2, v{g}
        v_add_f32_dpp v36, v36, v36 row_half_mirror row_mask:0xf bank_mask:0xf
        v_add_f32_dpp v38, v38, v38 row_half_mirror row_mask:0xf bank_mask:0xf
        s_nop 0
        v_cndmask_b32 v36, v36, v38, vcc
        ds_bpermute_b32 v36, v{g}, v36
        s_waitcnt lgkmcnt(0)
        v_mul_f32 v{g}, 0xbfb8aa3b, v36
        v_exp_f32 v{g}, v{g}
        s_nop 0
        v_add_f32 v{g}, 1.0, v{g}
        v_rcp_f32 v{fw.VG}, v{g}
        s_nop 0
        """)
    for r in range(20): a(f"v_mov_b32 v{r}, 0")
    vq.wait("kv0"); a(f"s_setprio {CFG['FPRIO']}\ns_barrier")
    if st.on in (2, 6): st()
    gate()
    vq.wait("kv1")
    if st.on == 6: st()
    a("s_barrier")
    if st.on == 6: st()
    a("")
    publish(a, vq, L, "pub2", 8)
    if CFG['TAG']: publish(a, vq, L, "pub2b", 9)
    def w2_ops(m):
        ops = []
        for i in range(2):
            for j in range(5):
                def f(i=i, j=j):
                    a(f"s_add_u32 m0, s6, {WBUF + (m & 1)*40960 + i*fw.STEP + 1024*j}\ns_nop 0")
                    vq(f"w{m}", f"buffer_load_dwordx4 v{fw.VD+j}, s[36:39], s7 offen lds")
                    if j == 4: a(f"s_add_u32 s7, s7, {32*1280 if i == 0 else (256-32)*1280}")
                ops.append(f)
        return ops
    def h_ops(m):
        ops = []
        for i in range(8):
            def f(i=i):
                vq(f"h{m}", f"buffer_load_dwordx4 {vr(fw.HB[m&1]+4*i,4)}, v{fw.VH}, s[56:59], s4 offen offset:{2048*(i&1)}{SC}")
                if i & 1: a("s_add_u32 s4, s4, 4096")
            ops.append(f)
        return ops
    def wo_ops(steps, voff, lds0, src0, srcstep):
        ops = []
        for i in range(steps):
            for j in range(5):
                def f(i=i, j=j):
                    if j == 0: a(f"s_add_u32 s7, s11, {src0 + i*srcstep}")
                    a(f"s_add_u32 m0, s6, {lds0 + i*fw.STEP + 1024*j}\ns_nop 0")
                    vq("wo", f"buffer_load_dwordx4 v{voff+j}, s[48:51], s7 offen lds")
                ops.append(f)
        return ops
    for f in w2_ops(0): f()
    gate_math()
    poll(a, vq, L, "poll2", F2A)
    for f in h_ops(0): f()
    if st.on in (3, 6): st()
    a("s_barrier")
    if st.on in (3, 6): st()
    a("")
    slots = [KV_A, KV_B, KV_C]
    def wo_tail():
        a(f"s_mul_i32 s11, s61, {160*1280}\ns_mul_i32 s6, s61, {fw.STEP}")
        for f in wo_ops(1, fw.HB[0], KV_C, 0, 0): f()
    for c in range(2, 8):
        m = c - 2
        side = []
        if c <= 6: side.append(lambda c=c: kv_dma(a, vq, f"kv{c+1}", slots[(c+1) % 3], c+1))
        if m+1 <= 5 and CFG['NOFFN'] in (0, 1, 3): side += w2_ops(m+1)
        if m+1 <= 5 and CFG['NOFFN'] in (0, 1, 4): side += h_ops(m+1)
        if c == 7:
            fw.dma_offsets(a, LANE, fw.VD, "main", 63)
            fw.dma_offsets(a, LANE, fw.HB[0], "tail", 63)
            a(f"s_mul_i32 s11, s61, {2*40*1280}")
            side += wo_ops(2, fw.VD, WBUF, 0, 40*1280) + [wo_tail]
        a(f"v_add_u32 v{fw.A1}, {(m&1)*40960}, v{fw.LA1}\nv_add_u32 v{fw.A2}, {(m&1)*40960}, v{fw.LA2}")
        vq.wait(f"h{m}")
        if CFG['NOFFN'] or (c == 7 and CFG['DEFER']):
            for f in side: f()
        else: gemm(a, fw.ACCB, [fw.HB[m&1]+4*i for i in range(8)], [i*fw.STEP for i in range(8)], side=side)
        if st.on == 3 and c in (2, 3, 4): st()
        if c < 7:
            vq.wait(f"kv{c+1}", f"w{m+1}")
            if st.on == 3 and c in (2, 3, 4): st()
            a("s_barrier")
            if st.on == 3 and c in (2, 3, 4) or st.on == 6: st()
    a("s_barrier")
    if st.on == 6: st()
    W2A, W2B = (KV_B, KV_A) if CFG['DEFER'] else (WBUF + 40960, WBUF + 40960 + 4*fw.STEP)
    def wo_q(lds, step0):
        a(f"s_mul_i32 s11, s61, {40*1280}\ns_mul_i32 s6, s61, {fw.STEP}")
        for f in wo_ops(1, fw.VD, lds, step0*40*1280, 0): f()
    if not CFG['DEFER']: wo_q(W2A, 8); wo_q(W2B, 12)
    for r in range(20): a(f"v_mov_b32 v{fw.ACCA+r}, 0")
    a(f"""
    v_sub_f32 v{g+3}, 1.0, v{fw.VG}
    v_lshrrev_b32 v{g}, 4, v{LANE}
    v_lshlrev_b32 v{g}, 9, v{g}
    v_and_b32 v{g+1}, 0x1ff, v{fw.VH}
    v_lshrrev_b32 v{g+1}, 1, v{g+1}
    v_add_u32 v{g}, v{g}, v{g+1}
    s_barrier                              ; BX
    """)
    if CFG['DEFER']:
        wo_q(W2A, 8)
        if not CFG['NOFFN']: gemm(a, fw.ACCB, [fw.HB[1]+4*i for i in range(8)], [i*fw.STEP for i in range(8)])
        a("s_nop 4")
    a(f"v_mov_b32 v40, {VOTE}\nv_mov_b32 v{fw.A1}, v{fw.LA1}\nv_mov_b32 v{fw.A2}, v{fw.LA2}")
    for r in range(20): a(f"v_mul_f32 v{fw.ACCB+r}, v{fw.ACCB+r}, v{g+3}")
    a(f"""
    s_barrier                              ; BV
    ds_read_b32 v40, v40
    s_waitcnt lgkmcnt(0)
    v_readfirstlane_b32 s3, v40
    s_nop 1
    s_cmp_eq_u32 s3, 0
    s_cbranch_scc1 {L('p4')}
    s_mov_b32 s15, 0
    s_mov_b32 s19, 8
    s_waitcnt vmcnt(0)
    """)
    pending = list(vq.q)
    a.label(L('lmax'))
    a("s_barrier")
    kv_dma(a, vq, "x", KV_B, None)
    a(f"s_waitcnt vmcnt(0)\ns_barrier\ns_add_u32 s15, s15, {CHUNK}\ns_sub_u32 s19, s19, 1\ns_cmp_lg_u32 s19, 0\ns_cbranch_scc1 {L('lmax')}\ns_barrier")
    for c in range(3): kv_dma(a, vq, "x", slots[c], c)
    a("s_waitcnt vmcnt(0)\ns_barrier\ns_barrier\ns_barrier")
    for c in range(2, 7):
        kv_dma(a, vq, "x", slots[(c+1) % 3], c+1)
        a("s_waitcnt vmcnt(0)\ns_barrier")
    wo_tail()
    a("s_barrier\ns_barrier")
    if CFG['DEFER']: wo_q(W2A, 8)
    a("s_waitcnt vmcnt(0)\ns_barrier")
    a.label(L('p4'))
    vq.q = pending
    if CFG['DEFER']: wo_q(W2B, 12)
    if st.on == 6: st()
    if st.on == 2: st.n = 9; st()
    if not CFG['TAG']:
        publish(a, vq, L, "pub3", 9)
        a(f"v_mov_b32 v{fw.VKV}, v{F3A}")
        poll(a, vq, L, "poll3", fw.VKV)
    elif CFG['SENT']:
        a(f"v_and_b32 v40, 31, v{LANE}\ns_and_b32 s3, s61, 1\ns_lshl_b32 s3, s3, 7\ns_add_u32 s3, s3, 32768\nv_lshl_add_u32 v40, v40, 8, s3")
        poll(a, vq, L, "poll3", 40, soff="s5", cmp="v_cmp_eq_u32 vcc, -1,")
    if st.on == 2: st()
    a(f"v_mov_b32 v{fw.VKV}, v{g}")
    def o_loads(i, so):
        if i < 16: return [f"buffer_load_dwordx4 {vr(80+4*i,4)}, v{fw.VH}, s[56:59], s{so} offen offset:{2048*(i&1)}{SC}"]
        return [f"buffer_load_dwordx2 {vr(80+4*i+2*u,2)}, v{fw.VKV}, s[56:59], s{so} offen offset:{2048*(i&1)+256*u}{SC}" for u in range(2)]
    a("s_mov_b32 s4, s5")
    for i in range(20):
        for t in o_loads(i, 4): vq(f"o{i}", t)
        if i & 1: a("s_add_u32 s4, s4, 4096")
    vq.wait("wo"); a("s_barrier")
    batches = {0: 2, 2: 6, 6: 12, 12: 20} if CFG['BAT'] == 0 else {0: 2, 2: 5, 5: 9, 9: 13, 13: 17, 17: 20}
    retry = []
    a(f"s_mov_b32 s10, {CFG['SPIN']}")
    def pre(i):
        if not CFG['TAG']: vq.wait(f"o{i}"); return
        if i not in batches: return
        e = batches[i]
        vq.wait(f"o{e-1}")
        a.label(L(f"chk{i}"))
        R = list(range(80+4*i, 80+4*e))
        tt = fw.AF[(i+1) & 1]
        a(f"v_max3_u32 v{tt}, v{R[0]}, v{R[1]}, v{R[2]}")
        for k in range(3, len(R)-1, 2): a(f"v_max3_u32 v{tt}, v{tt}, v{R[k]}, v{R[k+1]}")
        a(f"v_max_u32 v{tt}, v{tt}, v{R[-1]}\nv_cmp_eq_u32 vcc, -1, v{tt}\ns_nop 4\ns_cbranch_vccnz {L(f'retry{i}')}")
        a.label(L(f"ok{i}"))
        retry.append((i, e))
    def sw(off):
        def f():
            a(f"v_add_u32 v{fw.A1}, {off & 0xffffffff}, v{fw.LA1}\nv_add_u32 v{fw.A2}, {off & 0xffffffff}, v{fw.LA2}"); return 0
        return f
    offs = [i*fw.STEP for i in range(8)]
    for base in (W2A, W2B, KV_C): offs += [sw(base - WBUF)] + [i*fw.STEP for i in range(1, 4)]
    gemm(a, fw.ACCA, [80+4*i for i in range(20)], offs, pre=pre)
    if st.on == 2: st()
    a("s_nop 1")
    fw.final_store(a, LANE, 32, 18, 63, ['', ' sc1', ' nt', ' sc0 sc1'][CFG['OUTSC']])
    a(f"s_branch {L('end')}")
    for i, e in retry:
        a.label(L(f"retry{i}"))
        a(f"s_sub_u32 s10, s10, 1\ns_cmp_eq_u32 s10, 0\ns_cbranch_scc1 {L(f'ok{i}')}")
        for k in range(i, e):
            if k == i or not k & 1: a(f"s_add_u32 s4, s5, {4096*(k >> 1)}")
            for t in o_loads(k, 4): a(t)
        a(f"s_waitcnt vmcnt(0)\ns_branch {L(f'chk{i}')}")

def gen(name="gated_mix__mha_block__dense_activation_mish__prompt_kernel", ts=0):
    dbg = ts == 5
    spin = ts - 100 if ts > 100 else 0
    if dbg or spin: ts = 2
    a = Asm(); st = Stamps(a, ts, 64, rt=(ts >= 2))
    L = lambda s: f"L_{s}"
    a(f"s_cmp_ge_u32 s2, 256\ns_cbranch_scc1 {L('exit')}\ns_load_dwordx4 s[4:7], s[0:1], 0")
    st()
    if CFG['CODEPF']:
        a("s_getpc_b64 s[38:39]")
        a.label(L('pc'))
        a(f"""
        s_lshr_b32 s3, s2, 3
        s_mul_i32 s3, s3, 1152
        v_lshrrev_b32 v1, 6, v0
        v_and_b32 v2, 63, v0
        v_lshlrev_b32 v3, 1, v2
        v_and_b32 v3, 64, v3
        v_mul_u32_u24 v4, 96, v1
        v_add3_u32 v3, v3, v4, s3
        v_lshlrev_b32 v4, 6, v2
        v_lshl_add_u32 v4, v1, 8, v4
        v_cmp_gt_u32 vcc, 4, v2
        s_and_b32 s12, s2, 1
        s_lshl_b32 s12, s12, 3
        v_cndmask_b32 v3, v3, v4, vcc
        v_min_u32 v3, {L('exit')}-{L('pc')}, v3
        global_load_dword v{PFD+7}, v3, s[38:39]
        """)
    else: a("v_lshrrev_b32 v1, 6, v0\ns_and_b32 s12, s2, 1\ns_lshl_b32 s12, s12, 3")
    a(f"""
    s_bfe_u32 s13, s2, 0x30003
    v_readfirstlane_b32 s14, v1
    s_add_u32 s12, s12, s13               ; rb
    s_bfe_u32 s13, s2, 0x20001
    s_lshl_b32 s13, s13, 2
    s_lshr_b32 s15, s2, 6
    s_add_u32 s13, s13, s15               ; grp
    s_cmp_lt_u32 s14, 8
    s_cbranch_scc1 {L('awave')}
    """)
    on = st.on
    st.on = on if on >= 2 else 0
    f_waves(a, L, st)
    nf = st.n
    a(f"s_branch {L('end')}")
    a.label(L('awave'))
    st.on = (on == 1); st.n = 1
    a_waves(a, L, st)
    a.label(L('end'))
    if on:
        st.on = on
        if on >= 2: st.n = nf
        a("s_waitcnt vmcnt(0)")
        st()
        if spin:
            a(f"""
            s_cmp_lg_u32 s14, 8
            s_cbranch_scc1 {L('exit')}
            s_waitcnt lgkmcnt(0)
            s_sub_u32 s3, s{64+2*spin}, s64
            s_lshl_b32 s3, s3, 2
            s_add_u32 s3, s3, s{64+2*(st.n-1)}
            """)
            a.label(L('spin'))
            a(f"s_memrealtime s[4:5]\ns_waitcnt lgkmcnt(0)\ns_sub_u32 s4, s4, s3\ns_cmp_lt_i32 s4, 0\ns_cbranch_scc1 {L('spin')}")
        elif dbg:
            a(f"""
            s_cmp_lg_u32 s14, 8
            s_cbranch_scc1 {L('exit')}
            s_waitcnt lgkmcnt(0)
            s_not_b32 s64, s64
            s_mov_b64 exec, 1
            """)
            for i in range(st.n): a(f"v_mov_b32 v{i}, s{64+2*i}\nbuffer_atomic_umax v{i}, off, s[52:55], 0 offset:{4+4*i}")
            a("s_waitcnt vmcnt(0)")
        else: st.dump(14, 12, 0, slot=0)
    a.label(L('exit'))
    a("s_endpgm")
    return a, st.n

HDR = open("gated_mix__mha_block__dense_activation_mish__prompt.s.ref").read().split("; Override launch")[0].rstrip()
def write(path, ts=0):
    name = "gated_mix__mha_block__dense_activation_mish__prompt_kernel"
    a, n = gen(name, ts)
    h = check(a.lines)
    if h: print("hazards:", h)
    code, desc = kernel_wrap(name, a.text(), 168)
    open(path, "w").write(f"{HDR}\n; @launch grid=(256,1,1) block=(768,1,1) lds={LDS_BYTES}\n" + '.amdgcn_target "amdgcn-amd-amdhsa--gfx950"\n.text\n' + code + '.section .rodata,"a"\n' + desc)
    return n

if __name__ == "__main__":
    for spec in sys.argv[1:] or ["base"]:
        base = dict(CFG)
        for kv in spec.split("+"):
            if "=" in kv: k, v = kv.split("="); CFG[k] = int(v)
        for ts in (0, 1, 2, 3, 4, 5, 6) + ((101, 104, 108, 109, 110, 112) if spec == "base" else ()):
            n = write(f"f_{spec.replace('=', '')}{'_ts%d' % ts if ts else ''}.s", ts)
        CFG.update(base)
```

```python
from asm import *
from layout import *
def vr(a, n): return f"v[{a}:{a+n-1}]"
ACCB, ACCA = 0, 20
AF = (40, 60)
HB = (80, 112)
VG = 160
A1, A2 = 161, 162
LA1, LA2 = 163, 164
VH = 165
VKV = 166
VD = 144
FT = 154
FNV = 168
STEP = 5120

def tile_coords(a, sR, sC):
    a(f"""
    s_and_b32 s{sR}, s2, 3
    s_lshl_b32 s{sR}, s{sR}, 3
    s_bfe_u32 s{sC}, s2, 0x30003
    s_add_u32 s{sR}, s{sR}, s{sC}
    s_bfe_u32 s{sC}, s2, 0x10002
    s_lshl_b32 s{sC}, s{sC}, 2
    s_lshr_b32 s3, s2, 6
    s_add_u32 s{sC}, s{sC}, s3
    """)

def lane_setup(a, lane, sf, wbase):
    t = FT
    a(f"""
    v_lshrrev_b32 v{t}, 4, v{lane}            ; G
    v_bfe_u32 v{t+1}, v{lane}, 2, 2           ; r
    v_and_b32 v{t+2}, 3, v{lane}              ; c
    v_and_b32 v{t+3}, 1, v{t}
    v_lshl_add_u32 v{t+1}, v{t+3}, 2, v{t+1}
    v_lshl_add_u32 v{t+1}, v{t}, 3, v{t+1}
    v_mul_u32_u24 v{t+2}, 40, v{t+2}
    v_add_u32 v{t+2}, {wbase}, v{t+2}
    v_mad_u32_u24 v{LA1}, v{t+1}, s94, v{t+2}
    v_xor_b32 v{t+1}, 4, v{t+1}
    v_mad_u32_u24 v{LA2}, v{t+1}, s94, v{t+2}
    v_lshlrev_b32 v{t}, 9, v{t}
    v_and_b32 v{t+1}, 15, v{lane}
    v_lshl_add_u32 v{VH}, v{t+1}, 4, v{t}
    s_and_b32 s3, s{sf}, 1
    s_lshl_b32 s3, s3, 8
    v_add_u32 v{VH}, s3, v{VH}
    """)

def dma_offsets(a, lane, dst, kind, sC):
    t = FT
    a(f"s_mov_b32 s3, 0x1999999a\ns_mul_i32 s95, s{sC}, 160")
    for j in range(5):
        a(f"""
        v_add_u32 v{t}, {64*j}, v{lane}
        v_mul_hi_u32 v{t+1}, v{t}, s3
        v_mul_u32_u24 v{t+2}, 10, v{t+1}
        v_sub_u32 v{t}, v{t}, v{t+2}              ; piece
        v_lshrrev_b32 v{t+2}, 1, v{t+1}
        v_and_b32 v{t+2}, 4, v{t+2}
        v_xor_b32 v{t+1}, v{t+1}, v{t+2}
        """)
        if kind == "w2q":
            a(f"v_lshrrev_b32 v{t+2}, 3, v{t+1}\nv_lshlrev_b32 v{t+2}, 2, v{t+2}\nv_and_b32 v{dst+j}, 3, v{t+1}\nv_add_u32 v{t+2}, v{t+2}, v{dst+j}\nv_bfe_u32 v{t+1}, v{t+1}, 2, 1\nv_lshl_add_u32 v{t+1}, v{t+1}, 4, v{t+2}")
        if kind == "main":
            a(f"v_lshrrev_b32 v{t+2}, 4, v{t+1}\nv_lshl_add_u32 v{t+1}, v{t+2}, 3, v{t+1}")
        if kind == "tail":
            a(f"v_lshrrev_b32 v{t+2}, 3, v{t+1}\nv_lshl_add_u32 v{t+1}, v{t+2}, 5, v{t+1}\nv_add_u32 v{t+1}, 16, v{t+1}")
        a(f"""
        v_mul_u32_u24 v{t+1}, 1280, v{t+1}
        v_lshl_add_u32 v{t}, v{t}, 4, v{t+1}
        v_add_u32 v{dst+j}, s95, v{t}
        """)

def dma_step(a, voff, srd, lds_sgpr_expr, soff):
    s, c = lds_sgpr_expr
    for j in range(5):
        a(f"s_add_u32 m0, s{s}, {c+1024*j}\ns_nop 0\nbuffer_load_dwordx4 v{voff+j}, s[{srd}:{srd+3}], s{soff} offen lds")

def rd_a(buf, u, off):
    return [f"ds_read_b64_tr_b16 {vr(AF[buf]+4*u,2)}, v{A1} offset:{off+8*u}",
            f"ds_read_b64_tr_b16 {vr(AF[buf]+4*u+2,2)}, v{A2} offset:{off+8*u}"]

def gemm_steps(a, acc, bregs, offs, pre=None):
    n = len(bregs)
    def reads(i):
        o = offs[i]() if callable(offs[i]) else offs[i]
        return [rd_a(i & 1, u, o) for u in range(5)]
    for r in reads(0):
        for t in r: a(t)
    for i in range(n):
        a("s_waitcnt lgkmcnt(0)")
        if pre and pre.get(i): a(pre[i])
        nxt = reads(i+1) if i+1 < n else None
        for u in range(5):
            a(f"v_mfma_f32_16x16x32_bf16 {vr(acc+4*u,4)}, {vr(AF[i&1]+4*u,4)}, {vr(bregs[i],4)}, {vr(acc+4*u,4)}")
            if nxt:
                for t in nxt[u]: a(t)

def gate_loads(a, lane, srd_x, srd_g, sTok):
    pass

def gate(a, lane, srd_x, srd_g, sTok):
    t = FT
    a(f"""
    v_and_b32 v{t}, 15, v{lane}
    v_lshrrev_b32 v{t+1}, 4, v{lane}
    v_lshlrev_b32 v{t+1}, 4, v{t+1}           ; G*16
    v_mul_u32_u24 v{t}, 1280, v{t}
    v_add_u32 v{t}, v{t}, v{t+1}
    s_mul_i32 s3, s{sTok}, 1280
    v_mov_b32 v{ACCA}, 0
    v_mov_b32 v{ACCA+1}, 0
    v_mov_b32 v{ACCA+2}, 0
    v_mov_b32 v{ACCA+3}, 0
    """)
    for half in range(2):
        for i in range(10):
            s = 10*half + i
            a(f"buffer_load_dwordx4 {vr(40+4*i,4)}, v{t+1}, s[{srd_g}:{srd_g+3}], 0 offen offset:{64*s}")
            a(f"buffer_load_dwordx4 {vr(80+4*i,4)}, v{t}, s[{srd_x}:{srd_x+3}], s3 offen offset:{64*s}")
        a("s_waitcnt vmcnt(0)")
        for i in range(10):
            a(f"v_mfma_f32_16x16x32_bf16 {vr(ACCA,4)}, {vr(40+4*i,4)}, {vr(80+4*i,4)}, {vr(ACCA,4)}")
    a(f"""
    s_nop 7
    v_mul_f32 v{t}, 0xbfb8aa3b, v{ACCA}
    v_exp_f32 v{t}, v{t}
    s_nop 0
    v_add_f32 v{t}, 1.0, v{t}
    v_rcp_f32 v{VG}, v{t}
    s_nop 0
    """)

def final_store(a, lane, srd_out, sTok, sC, fl=''):
    t = FT
    a(f"""
    v_and_b32 v{t}, 15, v{lane}
    v_lshrrev_b32 v{t+1}, 4, v{lane}
    v_mul_u32_u24 v{t}, 1280, v{t}
    v_mad_u32_u24 v{t}, v{t+1}, 40, v{t}
    s_mul_i32 s3, s{sTok}, 1280
    s_mul_i32 s95, s{sC}, 160
    s_add_u32 s3, s3, s95
    """)
    for r in range(20): a(f"v_fma_f32 v{ACCA+r}, v{ACCA+r}, v{VG}, v{ACCB+r}")
    for r in range(10): a(f"v_cvt_pk_bf16_f32 v{AF[0]+r}, v{ACCA+2*r}, v{ACCA+2*r+1}")
    a(f"""
    buffer_store_dwordx4 {vr(AF[0],4)}, v{t}, s[{srd_out}:{srd_out+3}], s3 offen{fl}
    buffer_store_dwordx4 {vr(AF[0]+4,4)}, v{t}, s[{srd_out}:{srd_out+3}], s3 offen offset:16{fl}
    buffer_store_dwordx2 {vr(AF[0]+8,2)}, v{t}, s[{srd_out}:{srd_out+3}], s3 offen offset:32{fl}
    """)
```

```python
S, D, H, DH, F = 2048, 640, 32, 20, 1536
QM_OFF = 0
QT_OFF = QM_OFF + 32*64*1024
KV_OFF = QT_OFF + 32*2048*8
CHUNK  = 22528
KV_HEAD = 8*CHUNK
O_OFF  = KV_OFF + 32*KV_HEAD
H_OFF  = O_OFF + 64*40*1024
G_OFF  = H_OFF + 64*96*1024
B_OFF  = G_OFF + 8192
FL_OFF = B_OFF + 1024*5376
F1_OFF = FL_OFF
F2_OFF = F1_OFF + 16*256
F3_OFF = F2_OFF + 16*256
TOK_OFF = F3_OFF + 8*256 + 4096
WS_USED = TOK_OFF + 256
QSCALE = (20 ** -0.5) * 1.4426950408889634
```

```python
from asm import *
import fused
a, _ = fused.gen("main_kernel", 0)
A = {"m": ("main_kernel", a.text(), 168, 256, 768, 163840),
     "es": ("es_kernel", "s_endpgm\n", 8, 256, 256, 0),
     "eb": ("eb_kernel", "s_endpgm\n", 168, 256, 768, 163840),
     "e1": ("e1_kernel", "s_endpgm\n", 8, 1, 64, 0)}
for nm, l in {"A": "m", "B": "es m", "C": "eb m", "D": "m es", "E": "m eb", "F": "e1 m"}.items():
    open(f"y_{nm}.s", "w").write(module([A[x] for x in l.split()], fused.HDR))
```

```python
from asm import *
from layout import *
import struct, sys
import k2 as AT
import fw
from fw import vr
def fbits(x): return "0x%08x" % struct.unpack("<I", struct.pack("<f", x))[0]

CFG = dict(NF1=13, NPOLL=19, NTOK=5, FREE_EARLY=1, INIT=2, CATCH=1, PF=0, PFAT=1, PF2=0, PF2AT=3, PF3=0, PF3AT=0, ROT=2, PFSTRIDE=64, SEAM=1, ISS=11112112111011111100, NINIT=11, XKEEP=1, CA3=4, NTX=0, NTW=0, NTW1=0, NTW2=0, THR=0, BAT2=0, CA1=7, CA2=8, GSH=1, P4ROT=0, T32=1, M16=1, M16X=0, EARLY=18, LATE=1, HP1=0, HP2=0, XORP=0, KPF=0, KPF0=1, KPFW=0, KPF1=0, SLP=8, SLP3=4, GLATE=1, FPOIS=1, TS2=(10, 11, 12, 13, 14, 19), GPF=0, G1=4, G2=6, G3=8, RG=1, RM=7, RR=1, RA=5, RB=4, PK=1, OUTSC=0, BAT=1, SENT=1, DEFER=0, NOFFN=0, FPRIO=1, PRI=0, EPK=1, TAG=1, STAG=1, O1L=9, O1H=9, O2L=9, O2H=0, ATS=0, RTAIL=1, CODEPF=1, TSN=(7, 8, 12, 13), NOMM=0, NORD=0, SPIN=1 << 19)
SLOT, NSL = 32768, 5
KV_A, KV_B, KV_C = 0, 32768, 32768 + CHUNK
QM_LDS = CHUNK
QT_LDS = QM_LDS + 8192
WBUF = KV_C + CHUNK
VOTE = WBUF + 81920
LDS_BYTES = 163840
SC = " sc1"

class VmQ:
    def __init__(self, a): self.a = a; self.q = []
    def __call__(self, tag, text):
        self.a(text); self.q.append(tag)
    def wait(self, *tags):
        idx = [i for i, t in enumerate(self.q) if t in tags]
        if not idx: return
        n = len(self.q) - 1 - max(idx)
        assert n <= 63
        self.a(f"s_waitcnt vmcnt({n})")
        self.q = self.q[max(idx)+1:]
    def drain(self):
        self.a("s_waitcnt vmcnt(0)"); self.q = []

def srd(a, r, size, ptr=None):
    if ptr is not None: a(f"s_mov_b32 s{r}, s{ptr}\ns_mov_b32 s{r+1}, s{ptr+1}")
    a(f"s_mov_b32 s{r+2}, {size}\ns_mov_b32 s{r+3}, 0x20000")

ACC = (0, 16)
FB = 32
AX, AW, LX, LW = 153, 157, 159, 160
T = 80
BIAS = 104
HOUT = 104
LANE16, VADDRV = 163, 164
PFD = 128
def xf(b, s): return FB + 48*b + 12*s
def wf(b, s, t): return FB + 48*b + 12*s + 4 + 4*t
AW2, LW2 = 128, 130

def rd_stage(b, ntile, stride):
    L = []
    for s in range(4):
        if CFG['M16']:
            s32, u = s >> 1, s & 1
            L.append(f"ds_read_b128 {vr(xf(b,s),4)}, v{AX+s32} offset:{2048*u}")
            for t in range(ntile):
                o = 32*s32*stride + (64*t if stride == 192 else 0)
                ad = (AW2 if u else AW) + (t if stride == 256 else 0)
                L.append(f"ds_read_b64_tr_b16 {vr(wf(b,s,t),2)}, v{ad} offset:{o}")
                L.append(f"ds_read_b64_tr_b16 {vr(wf(b,s,t)+2,2)}, v{ad} offset:{o+4*stride}")
            continue
        L.append(f"ds_read_b128 {vr(xf(b,s),4)}, v{AX+s}")
        for t in range(ntile):
            o = 16*s*stride + (64*t if stride == 192 else 0)
            ad = AW + (t if stride == 256 else 0)
            L.append(f"ds_read_b64_tr_b16 {vr(wf(b,s,t),2)}, v{ad} offset:{o}")
            L.append(f"ds_read_b64_tr_b16 {vr(wf(b,s,t)+2,2)}, v{ad} offset:{o+4*stride}")
    return L
def mm(b, s, t):
    if CFG['M16']:
        s32, i = s >> 1, s & 1
        return "\n".join(f"v_mfma_f32_16x16x32_bf16 {vr(ACC[t]+8*j+4*i,4)}, {vr(wf(b,s,t),4)}, {vr(xf(b,2*s32+j),4)}, {vr(ACC[t]+8*j+4*i,4)}" for j in range(2))
    return f"v_mfma_f32_32x32x16_bf16 {vr(ACC[t],16)}, {vr(wf(b,s,t),4)}, {vr(xf(b,s),4)}, {vr(ACC[t],16)}"
def set_addr(a, stride):
    a(f"v_add_u32 v{AX}, s18, v{LX}\nv_add_u32 v{AW}, s18, v{LW}")
    if stride == 256: a(f"v_add_u32 v{AW+1}, s18, v{LW+1}")
    if CFG['M16']:
        a(f"v_xor_b32 v{AX+1}, 64, v{AX}\nv_xor_b32 v{AW2}, 32, v{AW}")
        if stride == 256: a(f"v_xor_b32 v{AW2+1}, 32, v{AW+1}")
    else: a(f"v_xor_b32 v{AX+1}, 32, v{AX}\nv_xor_b32 v{AX+2}, 64, v{AX}\nv_xor_b32 v{AX+3}, 0x60, v{AX}")
    a(f"s_mov_b32 s43, s18\ns_add_u32 s18, s18, {SLOT}\ns_cmp_eq_u32 s18, {NSL*SLOT}\ns_cselect_b32 s18, 0, s18")

def kloop(a, L, tag, ntile, stride, hooks, last=None, order=None, part=None):
    def stage(b, reads, tail):
        ms = [mm(b, s, t) for s in range(4) for t in range(ntile)]
        if CFG['NOMM']: ms = ["s_nop 0"]*len(ms)
        if order is not None:
            for m in ms[:order]: a(m)
            for t in reads: a(t)
            if tail: set_addr(a, stride)
            for m in ms[order:]: a(m)
            return
        nslot = len(ms) - CFG['RTAIL']*ntile//2
        per = -(-len(reads) // nslot) if reads else 0
        for i, m in enumerate(ms):
            a(m)
            for t in reads[i*per:(i+1)*per]: a(t)
            if i == nslot-1 and tail: set_addr(a, stride)
    def sync(b, first=False):
        for m, text in hooks.items():
            if first:
                if m == 1: a(text)
            elif (m & 1) == b and m > 1:
                a(f"s_cmp_lg_u32 s19, {m}\ns_cbranch_scc1 {L(tag+'_h%d' % m)}"); a(text); a.label(L(tag+'_h%d' % m))
        a("s_add_u32 s19, s19, 1\ns_waitcnt lgkmcnt(0)\ns_barrier")
    if part != 2:
        set_addr(a, stride)
        a("s_mov_b32 s19, 1\ns_barrier")
        for t in rd_stage(0, ntile, stride): a(t)
        set_addr(a, stride)
        if part == 1: return
    sync(1, True)
    a.label(L(tag))
    stage(0, rd_stage(1, ntile, stride), True)
    a(f"s_cmp_eq_u32 s19, 10\ns_cbranch_scc1 {L(tag+'_last')}")
    sync(0)
    stage(1, rd_stage(0, ntile, stride), True)
    sync(1)
    a(f"s_branch {L(tag)}")
    a.label(L(tag+'_last'))
    a("s_mov_b32 s18, s43\ns_waitcnt lgkmcnt(0)")
    if last: a(last)
    stage(1, [], False)

def pack16(a, src, dst, scale=None, n=16):
    if scale:
        for r in range(n): a(f"v_mul_f32 v{src+r}, {scale}, v{src+r}")
    for r in range(0, n, 2): a(f"v_cvt_pk_bf16_f32 v{dst+r//2}, v{src+r}, v{src+r+1}")
def pair_info(a, poff):
    a(f"s_mul_i32 s20, s13, 3\ns_add_u32 s20, s20, {poff}\ns_and_b32 s21, s20, 15\ns_lshr_b32 s20, s20, 4\ns_lshl_b32 s21, s21, 1")

def main_tile_store16(a, L, tag, t, poff):
    acc = ACC[t]; d = T + 8*t
    pair_info(a, poff)
    a(f"s_cmp_lg_u32 s20, 0\ns_cbranch_scc1 {L(tag+'kv')}")
    pack16(a, acc, d, "s30")
    a(f"""
    s_lshl_b32 s21, s21, 16
    s_add_u32 s21, s21, s28
    buffer_store_dwordx4 {vr(d,4)}, v131, s[4:7], s21 offen{SC}
    buffer_store_dwordx4 {vr(d+4,4)}, v131, s[4:7], s21 offen offset:256{SC}
    s_branch {L(tag+'done')}
    """)
    a.label(L(tag+'kv'))
    pack16(a, acc, d)
    a(f"""
    s_mul_i32 s21, s21, {KV_HEAD}
    s_add_u32 s21, s21, s29
    s_cmp_lg_u32 s20, 1
    s_cbranch_scc1 {L(tag+'v')}
    s_add_u32 s21, s21, s31
    buffer_store_dwordx4 {vr(d,4)}, v132, s[4:7], s21 offen{SC}
    buffer_store_dwordx4 {vr(d+4,4)}, v132, s[4:7], s21 offen offset:256{SC}
    s_branch {L(tag+'done')}
    """)
    a.label(L(tag+'v'))
    a(f"""
    s_add_u32 s21, s21, s32
    buffer_store_dwordx4 {vr(d,4)}, v{VADDRV}, s[4:7], s21 offen{SC}
    buffer_store_dwordx4 {vr(d+4,4)}, v{VADDRV}, s[4:7], s21 offen offset:512{SC}
    """)
    a.label(L(tag+'done'))

def tail_tile_store16(a, L):
    acc = ACC[1]
    a(f"""
    v_lshrrev_b32 v{T+20}, 4, v{LANE16}
    v_and_b32 v{T+16}, 15, v{T+20}
    v_bfe_u32 v{T+20}, v{T+20}, 4, 1
    v_lshlrev_b32 v{T+19}, 4, v{T+16}
    v_lshlrev_b32 v{T+16}, 3, v{T+16}
    v_lshl_add_u32 v{T+17}, v{T+20}, 14, v{T+16}
    v_mul_u32_u24 v{T+20}, {KV_HEAD}, v{T+20}
    v_add_u32 v{T+18}, v{T+20}, v{T+16}
    v_add_u32 v{T+19}, v{T+19}, v{T+20}
    v_mov_b32 v{T+10}, 0x3f80
    v_mov_b32 v{T+11}, 0
    v_mov_b32 v{T+14}, 0x3f80
    v_mov_b32 v{T+15}, 0
    """)
    for p in range(3):
        tag = f"tt{p}"; src = lambda j: acc + 8*j + 4*(p >> 1); d = lambda j: T + 8 + 4*j
        ex = "s_mov_b32 exec_lo, 0" if p & 1 else "s_mov_b32 exec_hi, 0"
        pair_info(a, p)
        a(f"{ex}\ns_cmp_lg_u32 s20, 0\ns_cbranch_scc1 {L(tag+'kv')}")
        for j in range(2): pack16(a, src(j), d(j), "s30", n=4)
        a(f"s_lshl_b32 s21, s21, 14\ns_add_u32 s21, s21, s33")
        for j in range(2): a(f"buffer_store_dwordx2 {vr(d(j),2)}, v{T+17}, s[4:7], s21 offen offset:{128*j}{SC}")
        a(f"s_branch {L(tag+'done')}")
        a.label(L(tag+'kv'))
        for j in range(2): pack16(a, src(j), d(j), n=4)
        a(f"""
        s_mul_i32 s21, s21, {KV_HEAD}
        s_add_u32 s21, s21, s29
        s_cmp_lg_u32 s20, 1
        s_cbranch_scc1 {L(tag+'v')}
        s_add_u32 s21, s21, s34
        """)
        for j in range(2): a(f"buffer_store_dwordx2 {vr(d(j),2)}, v{T+18}, s[4:7], s21 offen offset:{128*j}{SC}")
        a(f"s_branch {L(tag+'done')}")
        a.label(L(tag+'v'))
        a("s_add_u32 s21, s21, s42")
        for j in range(2): a(f"buffer_store_dwordx4 {vr(d(j),4)}, v{T+19}, s[4:7], s21 offen offset:{256*j}{SC}")
        a.label(L(tag+'done'))
        a("s_mov_b64 exec, -1\ns_nop 0")

def main_tile_store(a, L, tag, t, poff):
    if CFG['M16']: return main_tile_store16(a, L, tag, t, poff)
    acc = ACC[t]; d = T + 8*t
    pair_info(a, poff)
    a(f"s_cmp_lg_u32 s20, 0\ns_cbranch_scc1 {L(tag+'kv')}")
    pack16(a, acc, d, "s30")
    a(f"""
    s_lshl_b32 s21, s21, 16
    s_add_u32 s21, s21, s28
    s_add_u32 s22, s21, 65536
    buffer_store_dwordx4 {vr(d,4)}, v{LANE16}, s[4:7], s21 offen{SC}
    buffer_store_dwordx4 {vr(d+4,4)}, v{LANE16}, s[4:7], s22 offen{SC}
    s_branch {L(tag+'done')}
    """)
    a.label(L(tag+'kv'))
    pack16(a, acc, d)
    a(f"""
    s_mul_i32 s21, s21, {KV_HEAD}
    s_add_u32 s21, s21, s29
    s_cmp_lg_u32 s20, 1
    s_cbranch_scc1 {L(tag+'v')}
    s_add_u32 s21, s21, s31
    s_add_u32 s22, s21, {KV_HEAD}
    buffer_store_dwordx4 {vr(d,4)}, v{LANE16}, s[4:7], s21 offen{SC}
    buffer_store_dwordx4 {vr(d+4,4)}, v{LANE16}, s[4:7], s22 offen{SC}
    s_branch {L(tag+'done')}
    """)
    a.label(L(tag+'v'))
    a(f"""
    s_add_u32 s21, s21, s32
    s_add_u32 s22, s21, {KV_HEAD}
    buffer_store_dwordx4 {vr(d,4)}, v{VADDRV}, s[4:7], s21 offen{SC}
    buffer_store_dwordx4 {vr(d+4,4)}, v{VADDRV}, s[4:7], s22 offen{SC}
    """)
    a.label(L(tag+'done'))

def tail_tile_store(a, L):
    if CFG['M16']: return tail_tile_store16(a, L)
    acc = ACC[1]
    a(f"""
    v_lshrrev_b32 v{T+20}, 4, v{LANE16}
    v_and_b32 v{T+16}, 31, v{T+20}
    v_lshrrev_b32 v{T+20}, 5, v{T+20}
    v_lshlrev_b32 v{T+19}, 4, v{T+16}
    v_lshlrev_b32 v{T+16}, 3, v{T+16}
    v_lshl_add_u32 v{T+17}, v{T+20}, 14, v{T+16}
    v_mul_u32_u24 v{T+20}, {KV_HEAD}, v{T+20}
    v_add_u32 v{T+18}, v{T+20}, v{T+16}
    v_add_u32 v{T+19}, v{T+19}, v{T+20}
    """)
    for j in range(3):
        tag = f"tt{j}"; d = (T+8, T+12, ACC[1]+12)[j]
        pair_info(a, j)
        a(f"s_cmp_lg_u32 s20, 0\ns_cbranch_scc1 {L(tag+'kv')}")
        pack16(a, acc+4*j, d, "s30", n=4)
        a(f"""
        s_lshl_b32 s21, s21, 14
        s_add_u32 s21, s21, s33
        buffer_store_dwordx2 {vr(d,2)}, v{T+17}, s[4:7], s21 offen{SC}
        s_branch {L(tag+'done')}
        """)
        a.label(L(tag+'kv'))
        pack16(a, acc+4*j, d, n=4)
        a(f"""
        s_mul_i32 s21, s21, {KV_HEAD}
        s_add_u32 s21, s21, s29
        s_cmp_lg_u32 s20, 1
        s_cbranch_scc1 {L(tag+'v')}
        s_add_u32 s21, s21, s34
        buffer_store_dwordx2 {vr(d,2)}, v{T+18}, s[4:7], s21 offen{SC}
        s_branch {L(tag+'done')}
        """)
        a.label(L(tag+'v'))
        a(f"""
        v_mov_b32 v{d+2}, 0x3f80
        v_mov_b32 v{d+3}, 0
        s_add_u32 s21, s21, s42
        buffer_store_dwordx4 {vr(d,4)}, v{T+19}, s[4:7], s21 offen{SC}
        """)
        a.label(L(tag+'done'))

def mish(a, acc, d):
    LOG2E = fbits(1.4426950408889634)
    for b in range(0, 16, 8):
        R = range(b, b+8); R2 = range(b, b+8, 2); tt = lambda r: T + 8 + (r & 7); uu = lambda r: T + 16 + (r & 7)
        p = lambda r: vr(r, 2)
        if CFG['PK']:
            for r in R2: a(f"v_pk_mul_f32 {p(tt(r))}, {p(acc+r)}, s[44:45]")
            for r in R: a(f"v_min_f32 v{tt(r)}, s35, v{tt(r)}")
            for r in R: a(f"v_exp_f32 v{tt(r)}, v{tt(r)}")
            for r in R2: a(f"v_pk_add_f32 {p(uu(r))}, {p(tt(r))}, s[46:47]")
            for r in R2: a(f"v_pk_mul_f32 {p(tt(r))}, {p(tt(r))}, {p(uu(r))}")
            for r in R2: a(f"v_pk_add_f32 {p(uu(r))}, {p(tt(r))}, s[46:47]")
            for r in R: a(f"v_rcp_f32 v{uu(r)}, v{uu(r)}")
            for r in R2: a(f"v_pk_mul_f32 {p(tt(r))}, {p(tt(r))}, {p(acc+r)}")
            for r in R2: a(f"v_pk_mul_f32 {p(tt(r))}, {p(tt(r))}, {p(uu(r))}")
        else:
            for r in R: a(f"v_mul_f32 v{tt(r)}, {LOG2E}, v{acc+r}")
            for r in R: a(f"v_min_f32 v{tt(r)}, s35, v{tt(r)}")
            for r in R: a(f"v_exp_f32 v{tt(r)}, v{tt(r)}")
            for r in R: a(f"v_add_f32 v{uu(r)}, 2.0, v{tt(r)}")
            for r in R: a(f"v_mul_f32 v{tt(r)}, v{tt(r)}, v{uu(r)}")
            for r in R: a(f"v_add_f32 v{uu(r)}, 2.0, v{tt(r)}")
            for r in R: a(f"v_rcp_f32 v{uu(r)}, v{uu(r)}")
            for r in R: a(f"v_mul_f32 v{tt(r)}, v{tt(r)}, v{acc+r}")
            for r in R: a(f"v_mul_f32 v{tt(r)}, v{tt(r)}, v{uu(r)}")
        for r in R2: a(f"v_cvt_pk_bf16_f32 v{d+r//2}, v{tt(r)}, v{tt(r+1)}")
def bias_init(a, t):
    if CFG['M16']:
        for j in range(2):
            for r in range(4):
                a(f"v_lshlrev_b32 v{ACC[t]+8*j+2*r}, 16, v{BIAS+4*t+r}\nv_and_b32 v{ACC[t]+8*j+2*r+1}, 0xffff0000, v{BIAS+4*t+r}")
        return
    for r in range(8):
        a(f"v_lshlrev_b32 v{ACC[t]+2*r}, 16, v{BIAS+8*t+r}\nv_and_b32 v{ACC[t]+2*r+1}, 0xffff0000, v{BIAS+8*t+r}")

def pf_addr(a, dst, lane, per_row, nrows, row0, rowbytes, colbase_sgpr, col0):
    st = CFG['PFSTRIDE']; per_row = per_row*64//st
    tot = per_row*nrows; share = -(-tot // 256)
    assert share <= 64
    magic = -(-(1 << 32) // per_row)
    a(f"""
    s_mul_i32 s17, s37, {share}
    v_min_u32 v{T}, {share-1}, v{lane}
    v_add_u32 v{T}, s17, v{T}
    v_min_u32 v{T}, {tot-1}, v{T}
    s_mov_b32 s17, {magic}
    v_mul_hi_u32 v{T+1}, v{T}, s17
    v_mul_u32_u24 v{T+2}, {per_row}, v{T+1}
    v_sub_u32 v{T}, v{T}, v{T+2}
    v_mul_u32_u24 v{T+1}, {rowbytes}, v{T+1}
    v_mul_u32_u24 v{T}, {st}, v{T}
    v_add3_u32 v{dst}, v{T}, v{T+1}, s{colbase_sgpr}
    v_add_u32 v{dst}, {row0*rowbytes + col0}, v{dst}
    """)


class A4:
    SX, SY, O = 0, 32, 64
    KA, KT, QM, QT, VF = 96, 100, 102, 110, 114
    P = (122, 126)
    XW, XR = 165, 166
    AK, AKT, AV, LK, LKT, LV, KMASK, TMP, OOFF, OTOFF = 136, 137, 138, 139, 140, 141, 142, 143, 151, 152
CONST_LDS = VOTE + 64
XCH = 0
def a4_ka(li, dst=A4.KA, ad=A4.AK): return f"ds_read_b128 {vr(dst,4)}, v{ad} offset:{li*1024}"
def a4_kt(li, dst=A4.KT, ad=A4.AKT): return f"ds_read_b64 {vr(dst,2)}, v{ad} offset:{li*256}"
def a4_v(g, li):
    o = (li*32 + g*16)*48
    return [f"ds_read_b64_tr_b16 {vr(A4.VF+4*g,2)}, v{A4.AV} offset:{o}", f"ds_read_b64_tr_b16 {vr(A4.VF+4*g+2,2)}, v{A4.AV} offset:{o+8*48}"]
def a4_qk(Y, j, ka=A4.KA): return f"v_mfma_f32_32x32x16_bf16 {vr(Y+16*j,16)}, {vr(ka,4)}, {vr(A4.QM+4*j,4)}, 0"
def a4_t(Y, j, kt=A4.KT): return f"v_mfma_f32_32x32x8_bf16 {vr(Y+16*j,16)}, {vr(kt,2)}, {vr(A4.QT+2*j,2)}, {vr(Y+16*j,16)}"
def a4_pv(G): return f"v_mfma_f32_32x32x16_bf16 {vr(A4.O+16*(G&1),16)}, {vr(A4.VF+4*(G>>1),4)}, {vr(A4.P[G&1],4)}, {vr(A4.O+16*(G&1),16)}"
def a4_iter(a, q, par, kli, v1li, v0li, pos, v_switch=None):
    prio = [[(3,), (2,), (1,), (0,)], [(3,), (), (2,), (1, 0)], [(3,), (2,), (), (1, 0)], [(3,), (), (2, 1), (None, 0)], [(3,), (), (2,), (1, None, 0)], [(), (), (), ()]][CFG['PRI']][pos]
    pr = lambda k: a(f's_setprio {prio[k]}') if len(prio) > k and prio[k] is not None else None
    X, Y = (A4.SX, A4.SY) if par == 0 else (A4.SY, A4.SX)
    g = lambda G: X + 16*(G & 1) + 8*(G >> 1)
    E = lambda G, lo, hi: [a(f"v_exp_f32 v{g(G)+j}, v{g(G)+j}") for j in range(lo, hi)]
    C = lambda G: [a(f"v_cvt_pk_bf16_f32 v{A4.P[G&1]+j}, v{g(G)+2*j}, v{g(G)+2*j+1}") for j in range(4)]
    pr(0)
    q.wait("v0"); a(a4_qk(Y, 0)); E(0, 0, 3)
    a(a4_pv(3)); q.rd("v1", a4_v(1, v1li))
    if v_switch: a(v_switch)
    E(0, 3, 8); C(0)
    a(a4_qk(Y, 1)); q.rd("ka", a4_ka(kli)); E(1, 0, 3)
    a(a4_pv(0)); E(1, 3, 8); C(1)
    pr(1)
    q.wait("v1"); a(a4_t(Y, 0)); E(2, 0, 3)
    a(a4_pv(1)); q.rd("v0", a4_v(0, v0li)); E(2, 3, 8); C(2)
    pr(2)
    a(a4_t(Y, 1)); q.rd("kt", a4_kt(kli)); E(3, 0, 3)
    a(a4_pv(2)); E(3, 3, 8); C(3)
def a4_rowmax(a, X, dst, run=False):
    t = A4.TMP
    a(f"v_max3_f32 v{t}, v{X}, v{X+1}, v{X+2}")
    for j in range(3, 15, 2): a(f"v_max3_f32 v{t}, v{t}, v{X+j}, v{X+j+1}")
    a(f"v_max3_f32 v{dst}, v{t}, v{X+15}, v{dst}" if run else f"v_max_f32 v{dst}, v{t}, v{X+15}")
def a4_setm(a):
    t = A4.TMP
    for j in range(2): a(f"v_mov_b32 v{t+j}, v{t+3+j}")
    a("s_nop 0")
    for j in range(2): a(f"v_permlane32_swap_b32 v{t+j}, v{t+3+j}")
    a("s_nop 0")
    for j in range(2): a(f"v_max_f32 v{t+3+j}, v{t+j}, v{t+3+j}")
    a("s_mov_b32 exec_lo, 0")
    for j in range(2):
        a(f"""
        v_sub_f32 v{t}, 0, v{t+3+j}
        v_and_b32 v{t+1}, 0xffff0000, v{t}
        v_sub_f32 v{t}, v{t}, v{t+1}
        v_and_b32 v{t+2}, 0xffff0000, v{t}
        v_sub_f32 v{t}, v{t}, v{t+2}
        v_lshrrev_b32 v{t+1}, 16, v{t+1}
        v_or_b32 v{A4.QT+2*j}, v{t+1}, v{t+2}
        v_lshrrev_b32 v{A4.QT+2*j+1}, 16, v{t}
        """)
    a("s_mov_b64 exec, -1")

def attention(a, L, st):
    A = A4; t = A.TMP; q = AT.LdsQ(a)
    a.label(L('attn'))
    st()
    a(f"v_add_u32 v{t+1}, {KV_A}, v{LANE16}\nv_lshrrev_b32 v{t+2}, 1, v{LANE16}\nv_add_u32 v{t+2}, {KV_A+8192}, v{t+2}")
    if CFG['TAG'] and not CFG['FPOIS']:
        for r in range(4): a(f"v_mov_b32 v{A.SY+r}, -1")
        a(f"""
        buffer_store_dwordx4 {vr(A.SY,4)}, v{A.OOFF}, s[4:7], 0 offen{SC}
        s_mov_b32 exec_hi, 0
        buffer_store_dwordx2 {vr(A.SY,2)}, v{A.OTOFF}, s[4:7], 0 offen{SC}
        s_mov_b64 exec, -1
        """)
    for r in range(4): a(f"v_mov_b32 v{A.QT+r}, 0")
    def zero_state():
        for r in range(32): a(f"v_mov_b32 v{A.O+r}, 0")
        for r in range(4): a(f"v_mov_b32 v{A.VF+4+r}, 0")
        a(f"v_add_u32 v{A.AK}, {KV_A}, v{A.LK}\ns_mov_b32 s18, {KV_A}\nv_add_u32 v{A.AV}, {KV_A}, v{A.LV}\nv_mad_u32_u24 v{A.AKT}, v{A.KMASK}, s18, v{A.LKT}")
    zero_state()
    a("s_mov_b32 s20, 0\ns_barrier")
    st()
    a(f"""
    ds_read_b128 {vr(A.QM,4)}, v{t+5}
    ds_read_b128 {vr(A.QM+4,4)}, v{t+7}
    ds_read_b128 {vr(A.P[0],4)}, v{t+1}
    ds_read_b64 {vr(A.P[1],2)}, v{t+2}
    s_mov_b32 exec_hi, 0
    ds_read_b64 {vr(A.QT,2)}, v{t+6}
    ds_read_b64 {vr(A.QT+2,2)}, v{A.XW}
    s_mov_b64 exec, -1
    """)
    a(a4_ka(0)); a(a4_kt(0))
    a(f"""
    s_mul_i32 s24, s14, 3328
    s_xor_b32 s25, s14, 4
    s_mul_i32 s25, s25, 3328
    v_add_u32 v{A.XW}, s24, v{LANE16}
    v_add_u32 v{A.XR}, s25, v{LANE16}
    s_waitcnt lgkmcnt(2)
    """)
    for j in range(2): a(a4_qk(A.SX, j, A.P[0])); a(a4_t(A.SX, j, A.P[1]))
    a("s_nop 9")
    for j in range(2): a4_rowmax(a, A.SX+16*j, t+3+j)
    a4_setm(a)
    a(f"s_branch {L('havem')}")
    a.label(L('restart'))
    zero_state()
    a("s_barrier")
    a(a4_ka(0)); a(a4_kt(0))
    a.label(L('havem'))
    for r in range(4): a(f"v_mov_b32 v{A.P[1]+r}, 0")
    a("s_waitcnt lgkmcnt(0)")
    a(a4_qk(A.SX, 0)); a(a4_qk(A.SX, 1)); q.rd("ka", a4_ka(1)); q.rd("v0", a4_v(0, 0))
    a(a4_t(A.SX, 0)); a(a4_t(A.SX, 1)); q.rd("kt", a4_kt(1))
    a(f"s_mov_b32 s18, {KV_B}\ns_mov_b32 s19, 8\ns_nop 7\ns_branch {L('mid')}")
    state = list(q.q)
    a.label(L('loop'))
    a("s_waitcnt vmcnt(0)\ns_barrier")
    a(f"v_add_u32 v{A.AK}, s18, v{A.LK}\nv_mad_u32_u24 v{A.AKT}, v{A.KMASK}, s18, v{A.LKT}")
    a4_iter(a, q, 0, 0, 2, 3, 0)
    a4_iter(a, q, 1, 1, 3, 0, 1, v_switch=f"v_add_u32 v{A.AV}, s18, v{A.LV}")
    a(f"s_cmp_eq_u32 s18, {KV_B}\ns_cselect_b32 s24, {KV_C}, {KV_A}\ns_cmp_eq_u32 s18, {KV_A}\ns_cselect_b32 s18, {KV_B}, s24")
    a(f"s_sub_u32 s19, s19, 1\ns_cmp_eq_u32 s19, 0\ns_cbranch_scc1 {L('done')}")
    assert q.q == state, (q.q, state)
    a.label(L('mid'))
    a4_iter(a, q, 0, 2, 0, 1, 2)
    a4_iter(a, q, 1, 3, 1, 2, 3)
    assert q.q == state, (q.q, state)
    a(f"s_branch {L('loop')}")
    a.label(L('done'))
    a(a4_pv(3))
    O = A.O
    a("s_nop 11")
    for u in range(3): a(f"ds_write_b128 v{A.XW}, {vr(O+16+4*u,4)} offset:{XCH+1024*u}")
    a(f"v_lshrrev_b32 v{t}, 2, v{LANE16}\nv_sub_u32 v{t+1}, v{A.XW}, v{LANE16}\nv_add_u32 v{t+1}, v{t+1}, v{t}\nv_sub_u32 v{t+2}, v{A.XR}, v{LANE16}\nv_add_u32 v{t+2}, v{t+2}, v{t}")
    a(f"ds_write_b32 v{t+1}, v{O+28} offset:{XCH+3072}")
    a("s_waitcnt lgkmcnt(0)\ns_barrier")
    st()
    for u in range(3): a(f"ds_read_b128 {vr(A.SY+4*u,4)}, v{A.XR} offset:{XCH+1024*u}")
    a(f"ds_read_b32 v{A.SY+12}, v{t+2} offset:{XCH+3072}")
    a(f"s_mov_b32 s24, 0x7b800000        ; 2^120\ns_waitcnt lgkmcnt(0)")
    a(f"v_add_f32 v{O+12}, v{O+12}, v{A.SY+12}")
    if CFG['EPK']:
        p = lambda r: vr(r, 2)
        for r in range(0, 12, 2): a(f"v_pk_add_f32 {p(O+r)}, {p(O+r)}, {p(A.SY+r)}")
        a(f"v_rcp_f32 v{t+1}, v{O+12}")
        for r in range(0, 6, 2): a(f"v_pk_add_f32 {p(A.SY+r)}, {p(O+r)}, {p(O+6+r)}")
        a(f"v_mov_b32 v{t+2}, v{t+1}")
        a(f"v_pk_add_f32 {p(A.SY)}, {p(A.SY)}, {p(A.SY+2)}\nv_pk_add_f32 {p(A.SY)}, {p(A.SY)}, {p(A.SY+4)}")
        for r in range(0, 12, 2): a(f"v_pk_mul_f32 {p(O+r)}, {p(O+r)}, {p(t+1)}")
        a(f"v_add_f32 v{A.SY}, v{A.SY}, v{A.SY+1}\nv_fma_f32 v{t+1}, v{A.SY}, 0, v{O+12}")
    else:
        for r in range(12): a(f"v_add_f32 v{O+r}, v{O+r}, v{A.SY+r}")
        a(f"v_rcp_f32 v{t}, v{O+12}")
        a(f"v_mul_f32 v{t+1}, 0, v{O}")
        for j in range(1, 12): a(f"v_fmac_f32 v{t+1}, 0, v{O+j}")
        a(f"v_add_f32 v{t+1}, v{t+1}, v{O+12}")
        for j in range(12): a(f"v_mul_f32 v{O+j}, v{O+j}, v{t}")
    a(f"v_cmp_gt_f32 vcc, s24, v{t+1}")
    for j in range(6): a(f"v_cvt_pk_bf16_f32 v{A.SX+j}, v{O+2*j}, v{O+2*j+1}")
    a(f"""
    v_mov_b32 v{t+4}, {VOTE}
    s_cmp_lg_u32 s20, 0
    s_cbranch_scc1 {L('store')}
    s_cmp_eq_u64 vcc, -1
    s_cbranch_scc1 {L('store')}
    v_mov_b32 v{t+5}, 1
    ds_write_b32 v{t+4}, v{t+5}
    s_branch {L('vote')}
    """)
    a.label(L('store'))
    a(f"""
    buffer_store_dwordx4 {vr(A.SX,4)}, v{A.OOFF}, s[4:7], 0 offen{SC}
    s_mov_b32 exec_hi, 0
    buffer_store_dwordx2 {vr(A.SX+4,2)}, v{A.OTOFF}, s[4:7], 0 offen{SC}
    s_mov_b64 exec, -1
    """)
    a.label(L('vote'))
    a(f"""
    s_waitcnt {'' if CFG['TAG'] else 'vmcnt(0) '}lgkmcnt(0)
    s_barrier                              ; BV
    s_cmp_lg_u32 s20, 0
    s_cbranch_scc1 {L('end')}
    ds_read_b32 v{t+5}, v{t+4}
    s_waitcnt lgkmcnt(0)
    v_readfirstlane_b32 s24, v{t+5}
    s_nop 1
    s_cmp_eq_u32 s24, 0
    s_cbranch_scc1 {L('end')}
    s_mov_b32 s20, 1
    s_mov_b32 s19, 8
    v_mov_b32 v{t+3}, 0xff800000
    v_mov_b32 v{t+4}, 0xff800000
    v_add_u32 v{A.AK}, {KV_B}, v{LANE16}
    v_lshrrev_b32 v{A.AKT}, 1, v{LANE16}
    v_add_u32 v{A.AKT}, {KV_B+8192}, v{A.AKT}
    s_mov_b32 exec_lo, 0
    """)
    for r in range(4): a(f"v_mov_b32 v{A.QT+r}, 0")
    a("s_mov_b64 exec, -1")
    a.label(L('maxloop'))
    a("s_barrier\ns_barrier\ns_mov_b32 s24, 8")
    a.label(L('maxblk'))
    a(a4_ka(0)); a(a4_kt(0)); a(f"v_add_u32 v{A.AK}, 1024, v{A.AK}\nv_add_u32 v{A.AKT}, 256, v{A.AKT}\ns_waitcnt lgkmcnt(0)")
    for j in range(2): a(a4_qk(A.SX, j))
    for j in range(2): a(a4_t(A.SX, j))
    a("s_nop 11")
    for j in range(2): a4_rowmax(a, A.SX+16*j, t+3+j, run=True)
    a(f"s_sub_u32 s24, s24, 1\ns_cmp_lg_u32 s24, 0\ns_cbranch_scc1 {L('maxblk')}")
    a(f"v_subrev_u32 v{A.AK}, 8192, v{A.AK}\nv_subrev_u32 v{A.AKT}, 2048, v{A.AKT}")
    a(f"s_sub_u32 s19, s19, 1\ns_cmp_lg_u32 s19, 0\ns_cbranch_scc1 {L('maxloop')}")
    a4_setm(a)
    a(f"s_barrier\ns_branch {L('restart')}")

def a_waves(a, L, st):
    t = AT.TMP
    a(f"""
    s_waitcnt lgkmcnt(0)
    s_load_dwordx4 s[44:47], s[0:1], 0
    s_load_dwordx2 s[4:5], s[0:1], 80
    s_load_dwordx2 s[8:9], s[0:1], 40
    s_load_dwordx2 s[52:53], s[0:1], 32
    s_load_dwordx2 s[56:57], s[0:1], 48
    s_load_dwordx2 s[60:61], s[0:1], 16
    s_and_b32 s15, s14, 3                 ; tb
    s_lshr_b32 s16, s14, 2                ; 0 / 1
    s_lshr_b32 s37, s2, 3
    s_lshl_b32 s37, s37, 3
    s_add_u32 s37, s37, s14
    v_and_b32 v{T+23}, 63, v0             ; lane
    """)
    lane = T+23
    if CFG['KPF']:
        a(f"""
        s_cmp_lg_u32 s14, {CFG['KPFW']}
        s_cbranch_scc1 {L('nokpf')}
        v_lshrrev_b32 v{T}, 3, v{lane}
        s_lshl_b32 s17, s2, 3
        v_add_u32 v{T}, s17, v{T}
        v_mul_u32_u24 v{T}, 1280, v{T}
        v_and_b32 v{T+1}, 7, v{lane}
        v_lshl_add_u32 v{T}, v{T+1}, 4, v{T}
        s_mul_i32 s17, s2, 960
        v_lshl_add_u32 v{T+1}, v{lane}, 4, s17
        s_waitcnt lgkmcnt(0)
        s_mov_b32 s48, s46
        s_mov_b32 s49, s47
        """)
        srd(a, 44, 2621440); srd(a, 48, 2457600)
        for k in range(CFG['KPF0'], 10):
            a(f"s_mov_b32 s17, {k*245760}")
            a(f"buffer_load_dwordx4 {vr(PFD,4)}, v{T}, s[44:47], 0 offen offset:{128*k}")
            a(f"buffer_load_dwordx4 {vr(PFD,4)}, v{T+1}, s[48:51], s17 offen")
        a.label(L('nokpf'))
    if CFG['KPF1']:
        a(f"s_mul_i32 s17, s2, 768\nv_min_u32 v{PFD+4}, 47, v{lane}\nv_lshl_add_u32 v{PFD+4}, v{PFD+4}, 4, s17\ns_waitcnt lgkmcnt(0)")
        srd(a, 52, 1966080)
    if CFG['GPF']:
        a(f"""
        s_lshl_b32 s38, s2, 3
        s_add_u32 s38, s38, s14
        s_mul_i32 s39, s38, 400
        s_mul_i32 s38, s38, 960
        v_lshlrev_b32 v{PFD+4}, 4, v{lane}
        s_waitcnt lgkmcnt(0)
        """)
        srd(a, 52, 1966080); srd(a, 56, 1966080); srd(a, 60, 819200)
    if CFG['PF']:
        a("s_and_b32 s38, s2, 1\ns_mul_i32 s38, s38, 1310720\ns_bfe_u32 s39, s2, 0x20001\ns_mul_i32 s39, s39, 960")
        pf_addr(a, PFD, lane, 10, 1024, 0, 1280, 38, 640)
        pf_addr(a, PFD+1, lane, 15, 320, 320, 3840, 39, 0)
        a("s_waitcnt lgkmcnt(0)\ns_mov_b32 s48, s46\ns_mov_b32 s49, s47")
        srd(a, 44, 2621440); srd(a, 48, 2457600)
        pf1 = f"buffer_load_dword v{PFD}, v{PFD}, s[44:47], 0 offen\nbuffer_load_dword v{PFD+1}, v{PFD+1}, s[48:51], 0 offen"
        if CFG['PFAT'] == 0: a(pf1)
    if CFG['PF2'] or CFG['PF3']:
        a("s_waitcnt lgkmcnt(0)")
        a("s_bfe_u32 s39, s2, 0x20001\ns_mul_i32 s39, s39, 768\ns_bfe_u32 s38, s2, 0x10002\ns_mul_i32 s38, s38, 640")
        pf_addr(a, PFD+2, lane, 12, 640, 0, 3072, 39, 0)
        pf_addr(a, PFD+3, lane, 10, 1536, 0, 1280, 38, 0)
        pf_addr(a, PFD+4, lane, 10, 640, 0, 1280, 38, 0)
        srd(a, 52, 1966080); srd(a, 56, 1966080); srd(a, 60, 819200)
    a(f"""
    v_mov_b32 v{T}, v{lane}
    v_and_b32 v{T+1}, 31, v{T}            ; t
    v_lshrrev_b32 v{T+2}, 5, v{T}         ; h
    v_lshlrev_b32 v{LANE16}, 4, v{T}
    v_lshlrev_b32 v{VADDRV}, 5, v{T+1}
    v_lshl_add_u32 v{VADDRV}, v{T+2}, 4, v{VADDRV}
    v_bfe_u32 v{T+3}, v{T+1}, 1, 3
    v_xor_b32 v{T+3}, v{T+3}, v{T+2}
    v_lshlrev_b32 v{T+3}, 4, v{T+3}
    v_lshl_add_u32 v{LX}, v{T+1}, 7, v{T+3}
    s_lshl_b32 s17, s15, 12
    v_add_u32 v{LX}, s17, v{LX}
    v_bfe_u32 v{T+3}, v{T}, 2, 2          ; r
    v_lshl_add_u32 v{T+4}, v{T+2}, 3, v{T+3}      ; krow = 8h + r
    v_bfe_u32 v{T+5}, v{T}, 4, 1
    v_and_b32 v{T+6}, 3, v{T}             ; c
    v_and_b32 v{T+7}, 1, v{T}
    v_lshlrev_b32 v{T+7}, 1, v{T+7}
    v_bfe_u32 v{T+8}, v{T}, 1, 1
    v_add_u32 v{T+7}, v{T+7}, v{T+8}      ; perm[c]
    v_lshlrev_b32 v{T+11}, 3, v{(T+6) if CFG['M16'] else (T+7)}
    v_lshlrev_b32 v{T+5}, 5, v{T+5}
    v_lshl_add_u32 v{T+7}, v{T+7}, 3, v{T+5}
    v_min_u32 v{T+12}, 1, v{T+6}
    v_lshl_add_u32 v{T+6}, v{T+6}, 3, v{T+5}      ; half*32 + c*8
    v_lshlrev_b32 v{T+8}, 8, v{T+4}
    v_add_u32 v{T+8}, 16384, v{T+8}
    s_lshl_b32 s17, s16, 1
    v_xor_b32 v{T+9}, s17, v{T+3}
    v_lshl_add_u32 v{LW}, v{T+9}, 6, v{T+8}
    v_xor_b32 v{T+9}, 1, v{T+9}
    v_lshl_add_u32 v{LW+1}, v{T+9}, 6, v{T+8}
    v_add_u32 v{LW}, v{LW}, v{T+7}
    s_cmp_eq_u32 s16, 0
    s_cselect_b64 vcc, -1, 0
    v_mul_u32_u24 v{T+10}, 192, v{T+4}
    v_cndmask_b32 v{T+6}, v{T+6}, v{T+7}, vcc
    v_add_u32 v{LW+1}, v{LW+1}, v{T+6}
    s_lshl_b32 s17, s16, 7
    s_add_u32 s17, s17, 16384
    v_add3_u32 v{LW+2}, v{T+10}, v{T+7}, s17      ; P2 address
    s_lshl_b32 s24, s16, 12
    v_add_u32 v{A4.LK}, s24, v{LANE16}
    s_lshl_b32 s24, s16, 10
    s_add_u32 s24, s24, 8192
    v_lshl_add_u32 v{A4.LKT}, v{T}, 3, s24
    v_mov_b32 v{T+14}, {CONST_LDS}
    v_cmp_eq_u32 vcc, 0, v{T+2}
    v_lshl_add_u32 v{T+13}, v{T+2}, 2, v{T+3}     ; 4h + r
    v_mul_u32_u24 v{T+13}, 48, v{T+13}
    v_cndmask_b32 v{A4.LKT}, v{T+14}, v{A4.LKT}, vcc
    v_xor_b32 v{A4.KMASK}, 1, v{T+2}
    v_lshl_add_u32 v{T+12}, v{T+12}, 3, 32
    v_cmp_eq_u32 vcc, 0, v{T+5}
    s_and_b32 s40, s2, 7
    s_lshl_b32 s40, s40, 2
    s_bfe_u32 s41, s2, 0x20003
    v_cndmask_b32 v{T+11}, v{T+12}, v{T+11}, vcc
    s_add_u32 s40, s40, s41               ; head
    s_lshr_b32 s41, s2, 5
    s_mul_i32 s24, s16, 6144
    s_add_u32 s24, s24, 10240
    v_add3_u32 v{A4.LV}, v{T+13}, v{T+11}, s24
    s_lshl_b32 s26, s15, 1
    s_add_u32 s26, s26, s16
    s_lshl_b32 s25, s41, 3
    s_add_u32 s25, s25, s26
    s_mul_i32 s29, s25, 40960
    s_add_u32 s29, s29, {O_OFF}
    s_lshl_b32 s30, s40, 10
    s_add_u32 s30, s30, s29
    v_add_u32 v{A4.OOFF}, s30, v{LANE16}
    s_lshl_b32 s30, s40, 8
    s_add_u32 s30, s30, s29
    s_add_u32 s30, s30, 32768
    v_lshl_add_u32 v{A4.OTOFF}, v{T+1}, 3, s30
    s_lshl_b32 s30, s26, 10
    s_add_u32 s30, s30, {QM_LDS}
    v_add_u32 v{t+5}, s30, v{LANE16}
    s_xor_b32 s27, s26, 1
    s_lshl_b32 s30, s27, 10
    s_add_u32 s30, s30, {QM_LDS}
    v_add_u32 v{t+7}, s30, v{LANE16}
    s_lshl_b32 s30, s26, 8
    s_add_u32 s30, s30, {QT_LDS}
    v_lshl_add_u32 v{t+6}, v{T+1}, 3, s30
    s_lshl_b32 s30, s27, 8
    s_add_u32 s30, s30, {QT_LDS}
    v_lshl_add_u32 v{A4.XW}, v{T+1}, 3, s30
    """)
    if CFG['M16']:
        a(f"""
        v_and_b32 v{T+1}, 15, v{T}            ; t
        v_lshrrev_b32 v{T+9}, 4, v{T}         ; G
        v_bfe_u32 v{T+10}, v{T+1}, 1, 3
        v_xor_b32 v{T+10}, v{T+10}, v{T+9}
        v_lshlrev_b32 v{T+10}, 4, v{T+10}
        v_lshl_add_u32 v{LX}, v{T+1}, 7, v{T+10}
        s_lshl_b32 s17, s15, 12
        v_add_u32 v{LX}, s17, v{LX}
        v_lshl_add_u32 v{T+4}, v{T+9}, 3, v{T+3}      ; krow = 8G + r
        v_and_b32 v{T+5}, 1, v{T+9}
        v_and_b32 v{T+6}, 3, v{T}
        v_lshlrev_b32 v{T+6}, 3, v{T+6}
        v_lshl_add_u32 v{T+6}, v{T+5}, 5, v{T+6}      ; (G&1)*32 + c*8
        v_lshlrev_b32 v{T+8}, 8, v{T+4}
        v_add3_u32 v{T+8}, v{T+8}, v{T+6}, 0
        v_add_u32 v{T+8}, 16384, v{T+8}
        s_lshl_b32 s17, s16, 1
        v_xor_b32 v{T+10}, s17, v{T+3}
        v_lshl_add_u32 v{LW}, v{T+10}, 6, v{T+8}
        v_xor_b32 v{T+10}, 1, v{T+10}
        v_lshl_add_u32 v{LW+1}, v{T+10}, 6, v{T+8}
        v_mul_u32_u24 v{T+10}, 192, v{T+4}
        s_lshl_b32 s17, s16, 7
        s_add_u32 s17, s17, 16384
        v_add3_u32 v{LW+2}, v{T+10}, v{T+6}, s17
        v_lshrrev_b32 v{T+10}, 1, v{T+9}
        v_lshlrev_b32 v{T+11}, 4, v{T+1}
        v_lshl_add_u32 v{T+12}, v{T+5}, 9, v{T+11}    ; half*512 + t*16
        v_lshl_add_u32 v131, v{T+10}, 16, v{T+12}
        v_mul_u32_u24 v{T+10}, {KV_HEAD}, v{T+10}
        v_add_u32 v132, v{T+10}, v{T+12}
        v_lshlrev_b32 v{T+12}, 5, v{T+1}
        v_lshl_add_u32 v{T+12}, v{T+5}, 4, v{T+12}
        v_add_u32 v{VADDRV}, v{T+10}, v{T+12}
        v_lshl_add_u32 v167, v{T+9}, 9, v{T+11}
        v_lshlrev_b32 v{PFD+5}, 3, v{T+9}
        """)
    a(f"""
    s_lshl_b32 s23, s12, 2
    s_add_u32 s23, s23, s15               ; TB
    s_lshl_b32 s28, s23, 10
    s_add_u32 s28, s28, {QM_OFF}
    s_lshr_b32 s29, s23, 3
    s_mul_i32 s29, s29, {CHUNK}
    s_add_u32 s29, s29, {KV_OFF}
    s_and_b32 s34, s23, 7
    s_lshl_b32 s31, s34, 10
    s_add_u32 s32, s31, 10240
    s_lshl_b32 s42, s34, 9
    s_add_u32 s42, s42, 18432
    s_lshl_b32 s34, s34, 8
    s_add_u32 s34, s34, 8192
    s_lshl_b32 s33, s23, 8
    s_add_u32 s33, s33, {QT_OFF}
    s_mov_b32 s30, {fbits(QSCALE)}
    s_mov_b32 s35, {fbits(40.0)}
    s_mul_i32 s36, s13, 192
    s_lshl_b32 s17, s16, 7
    s_add_u32 s36, s36, s17
    v_lshlrev_b32 v{T+2}, 4, v{T+2}
    s_mov_b32 s18, 0
    s_waitcnt lgkmcnt(0)
    """)
    srd(a, 4, WS_USED); srd(a, 8, 3072)
    assert not (CFG['PF'] and CFG['PFAT'])
    a(f"s_mov_b32 s44, {fbits(1.4426950408889634)}\ns_mov_b32 s45, s44\ns_mov_b32 s46, 2.0\ns_mov_b32 s47, 2.0")
    if not CFG['M16']: a(f"v_mov_b32 v{PFD+5}, v{T+2}")
    a(f"buffer_load_dword v{PFD+6}, v{PFD+5}, s[8:11], s36 offen")
    biasld = "\n".join(f"buffer_load_dwordx4 {vr(BIAS+4*u,4)}, v{PFD+5}, s[8:11], s36 offen offset:{32*u}" for u in range(4))
    if CFG['M16']: biasld = "\n".join(f"buffer_load_dwordx2 {vr(BIAS+2*u,2)}, v{PFD+5}, s[8:11], s36 offen offset:{32*u}" for u in range(4))
    HST, HU = (167, 256) if CFG['M16'] else (LANE16, 1024)
    npo = 0
    for r in range(32): a(f"v_mov_b32 v{r}, 0")
    hooks1 = {CFG['PF2AT']: f"buffer_load_dword v{PFD+2}, v{PFD+2}, s[52:55], 0 offen"} if CFG['PF2'] else {}
    if CFG['KPF1']:
        hooks1[CFG['KPF1']] = "s_cmp_lg_u32 s15, 1\ns_cbranch_scc1 1f\ns_mul_i32 s17, s16, 983040\n" + "\n".join(
            f"buffer_load_dwordx4 {vr(PFD,4)}, v{PFD+4}, s[52:55], s17 offen\ns_add_u32 s17, s17, 196608" for k in range(5)) + "\n1:"
    if CFG['PF'] and CFG['PFAT']: hooks1[CFG['PFAT']] = pf1
    if CFG['GPF']:
        for k, (r, so) in zip((CFG['G1'], CFG['G2'], CFG['G3']), ((52, 38), (56, 38), (60, 39))):
            if k: hooks1[k] = hooks1.get(k, "") + f"\nbuffer_load_dwordx4 {vr(PFD,4)}, v{PFD+4}, s[{r}:{r+3}], s{so} offen"
    if CFG['ATS'] == 1 and st.on:
        for m in (5, 6, 7, 8):
            r = st.base + 4*st.n; st.n += 1
            hooks1[m] = hooks1.get(m, "") + f"\ns_memtime s[{r}:{r+1}]\ns_memrealtime s[{r+2}:{r+3}]"
        st.on = False
    od = lambda k: CFG[k] if CFG['STAG'] and CFG[k] < 9 else None
    n0 = st.n
    hooks2 = {CFG['NF1']-10: "s_waitcnt vmcnt(0)"}
    if CFG['PF3']:
        k3 = CFG['PF3AT'] or CFG['NF1']-10
        hooks2[k3] = hooks2.get(k3, "") + f"\nbuffer_load_dword v{PFD+3}, v{PFD+3}, s[56:59], 0 offen\nbuffer_load_dword v{PFD+4}, v{PFD+4}, s[60:63], 0 offen"
    a(f"s_cmp_lg_u32 s16, 0\ns_cbranch_scc1 {L('hi')}")
    SM = CFG['SEAM']
    kloop(a, L, "p1lo", 2, 256, hooks1, last=None if SM else biasld, order=od('O1L'))
    st()
    if SM: a(biasld + f"\nv_mov_b32 v{LW}, v{LW+2}"); kloop(a, L, "p2lo", 2, 192, hooks2, part=1)
    else: a("s_nop 7")
    main_tile_store(a, L, "a", 0, 0)
    main_tile_store(a, L, "b", 1, 1)
    a(f"v_mov_b32 v{LW}, v{LW+2}\ns_waitcnt vmcnt({4+npo})")
    bias_init(a, 0); bias_init(a, 1)
    kloop(a, L, "p2lo", 2, 192, hooks2, order=od('O2L'), part=2 if SM else None)
    st()
    a(f"s_mul_i32 s21, s23, 98304\ns_mul_i32 s22, s13, 6144\ns_add_u32 s21, s21, s22\ns_add_u32 s21, s21, {H_OFF}\ns_waitcnt vmcnt(0)\ns_nop 6")
    for tt in range(2):
        mish(a, ACC[tt], HOUT+8*tt)
        for u in range(2): a(f"buffer_store_dwordx4 {vr(HOUT+8*tt+4*u,4)}, v{HST}, s[4:7], s21 offen offset:{2048*tt+HU*u}{SC}")
    a(f"s_branch {L('attn')}")
    a.label(L('hi'))
    a(f"s_setprio {CFG['HP1']}")
    kloop(a, L, "p1hi", 2, 256, hooks1, last=None if SM else biasld, order=od('O1H'))
    st.n = n0; st()
    if SM: a(biasld + f"\nv_mov_b32 v{LW}, v{LW+2}"); kloop(a, L, "p2hi", 1, 192, hooks2, part=1)
    else: a("s_nop 7")
    main_tile_store(a, L, "c", 0, 2)
    tail_tile_store(a, L)
    a(f"v_mov_b32 v{LW}, v{LW+2}\ns_waitcnt vmcnt({(8 if CFG['M16'] else 5)+npo})")
    bias_init(a, 0)
    a(f"s_setprio {CFG['HP2']}")
    kloop(a, L, "p2hi", 1, 192, hooks2, order=od('O2H'), part=2 if SM else None)
    a("s_setprio 0")
    st()
    a(f"s_mul_i32 s21, s23, 98304\ns_mul_i32 s22, s13, 6144\ns_add_u32 s21, s21, s22\ns_add_u32 s21, s21, {H_OFF+4096}\ns_waitcnt vmcnt(0)\ns_nop 6")
    mish(a, ACC[0], HOUT)
    for u in range(2): a(f"buffer_store_dwordx4 {vr(HOUT+4*u,4)}, v{HST}, s[4:7], s21 offen offset:{HU*u}{SC}")
    attention(a, L, st)

VX, VW, VW1 = 10, 14, 18
LANE = 167
FPOLL = 159

def f_stage(a, vq, n):
    slot = (n % NSL) * SLOT
    if CFG['XORP']: a(f"s_xor_b32 s92, s93, {(n % 10)*128}")
    if CFG['XKEEP'] and n == 10:
        a("s_add_u32 s92, s92, 640\ns_sub_u32 s20, s92, 1280\ns_cmp_ge_u32 s92, 1280\ns_cselect_b32 s92, s20, s92")
    a(f"s_add_u32 m0, s18, {slot}\ns_mul_i32 s20, s92, {1920 if n < 10 else 1536}")
    for j in range(0 if CFG['XKEEP'] and 10 <= n < 15 else 4): vq(f"st{n}", f"buffer_load_dwordx4 v{VX+j}, s[4:7], s92 offen offset:{1024*j}{' nt' if n < CFG['NTX'] else ''} lds")
    if n < 10:
        a(f"s_add_u32 m0, s18, {slot+16384}\ns_add_u32 s92, s92, 128")
        for j in range(4): vq(f"st{n}", f"buffer_load_dwordx4 v{VW+j}, s[8:11], s20 offen offset:{1024*j}{' nt' if n < CFG['NTW'] else ''} lds")
    else:
        a(f"s_add_u32 m0, s19, {slot+16384}\ns_add_u32 s92, s92, 128")
        for j in range(3): vq(f"st{n}", f"buffer_load_dwordx4 v{VW1+j}, s[24:27], s20 offen offset:{1024*j}{' nt' if CFG['NTW1'] else ''} lds")
    a("s_cmp_eq_u32 s92, 1280\ns_cselect_b32 s92, 0, s92")

VV = fw.VD + 6
def kv_dma(a, vq, tag, slot, chunk):
    if chunk is not None: a(f"s_mov_b32 s15, {chunk*CHUNK}")
    a(f"s_add_u32 m0, s17, {slot}\ns_sub_u32 s21, s90, s17")
    for j in range(2): vq(tag, f"buffer_load_dwordx4 v{fw.VKV}, s[28:31], s15 offen offset:{1024*j}{SC} lds")
    a(f"s_add_u32 m0, s91, {slot}\ns_add_u32 s21, s21, s15")
    for j in range(3): vq(tag, f"buffer_load_dwordx4 v{VV+j}, s[28:31], s15 offen offset:{1024*j}{SC} lds")
    a(f"s_add_u32 m0, s90, {slot}\ns_mov_b32 exec_hi, 0")
    vq(tag, f"buffer_load_dwordx4 v{fw.VKV}, s[28:31], s21 offen{SC} lds")
    a("s_mov_b64 exec, -1")

def poll(a, vq, L, tag, addr, soff='0', cmp='v_cmp_ne_u32 vcc, s60,', thr=0):
    a(f"s_mov_b32 s3, {CFG['SPIN']}")
    a.label(L(tag))
    a(f"""
    buffer_load_dword v{FPOLL}, v{addr}, s[56:59], {soff} offen{SC}
    s_sub_u32 s3, s3, 1
    s_cmp_eq_u32 s3, 0
    s_cbranch_scc1 {L(tag+'_ok')}
    s_waitcnt vmcnt(0)
    {cmp} v{FPOLL}
    s_nop 4
    """)
    if thr: a(f"s_and_b32 s21, vcc_lo, 0xffff\ns_bcnt1_i32_b32 s21, s21\ns_cmp_le_u32 s21, {thr}\ns_cbranch_scc1 {L(tag+'_ok')}")
    else: a(f"s_cbranch_vccz {L(tag+'_ok')}")
    a(f"""
    s_sleep {CFG['SLP3'] if tag == 'poll3' else CFG['SLP']}
    s_branch {L(tag)}
    """)
    a.label(L(tag+'_ok'))
    vq.q = []

def publish(a, vq, L, tag, soff):
    a(f"""
    s_cmp_lg_u32 s61, 0
    s_cbranch_scc1 {L(tag)}
    v_mov_b32 v{FPOLL-1}, s{soff}
    v_mov_b32 v{FPOLL-2}, s60
    s_mov_b64 exec, 1
    buffer_store_dword v{FPOLL-2}, v{FPOLL-1}, s[56:59], 0 offen{SC}
    s_mov_b64 exec, -1
    """)
    a.label(L(tag))

def gemm(a0, acc, bregs, offs, side=None, pre=None, exp=0):
    def a(t):
        if exp == 5 and t.startswith("ds_read"): return
        if exp == 6 and t.startswith("v_mfma"): return
        a0(t)
    n = len(bregs); side = side or []
    per = -(-len(side) // n)
    def reads(i):
        o = offs[i]() if callable(offs[i]) else offs[i]
        return [fw.rd_a(i & 1, u, o) for u in range(5)]
    for r in reads(0):
        for t in r: a(t)
    for i in range(n):
        if pre: pre(i)
        nxt = reads(i+1) if i+1 < n else None
        for u in range(5):
            if u in (0, 2, 4):
                left = 2*(5 - min(u+2, 5))
                a(f"s_waitcnt lgkmcnt({left + (2*u if nxt else 0)})")
            a(f"v_mfma_f32_16x16x32_bf16 {vr(acc+4*u,4)}, {vr(fw.AF[i&1]+4*u,4)}, {vr(bregs[i],4)}, {vr(acc+4*u,4)}")
            if nxt:
                for t in nxt[u]: a(t)
        for f in side[i*per:(i+1)*per]: f()

def gemm2(a0, bregs, offs, side=None, pre=None, exp=0):
    def a(t):
        if exp == 5 and t.startswith("ds_read"): return
        if exp == 6 and t.startswith("v_mfma"): return
        a0(t)
    n = len(bregs); side = side or []
    per = -(-len(side) // n)
    def reads(i):
        o = offs[i]() if callable(offs[i]) else offs[i]
        return [fw.rd_a(i & 1, u, o) for u in range(5)]
    for r in reads(0):
        for t in r: a(t)
    for i in range(n):
        if pre: pre(i)
        nxt = reads(i+1) if i+1 < n else None
        for u in range(5):
            if u in (0, 2, 4):
                left = 2*(5 - min(u+2, 5))
                a(f"s_waitcnt lgkmcnt({left + (2*u if nxt else 0)})")
            for j in range(2):
                a(f"v_mfma_f32_16x16x32_bf16 {vr(20*j+4*u,4)}, {vr(fw.AF[i&1]+4*u,4)}, {vr(bregs[i]+4*j,4)}, {vr(20*j+4*u,4)}")
                if nxt: a(nxt[u][j])
        for f in side[i*per:(i+1)*per]: f()

def f_waves(a, L, st):
    vq = VmQ(a)
    if CFG['CODEPF']: vq.q.append("code")
    a(f"""
    s_load_dwordx2 s[24:25], s[0:1], 32
    s_load_dwordx4 s[52:55], s[0:1], 72
    s_load_dwordx4 s[36:39], s[0:1], 48
    s_load_dwordx2 s[48:49], s[0:1], 16
    s_load_dwordx2 s[32:33], s[0:1], 64
    s_setprio 3
    """)
    if st.on == 7: st()
    a(f"""
    s_sub_u32 s61, s14, 8                 ; f
    v_and_b32 v{LANE}, 63, v0
    v_lshrrev_b32 v2, 3, v{LANE}
    v_lshrrev_b32 v3, 4, v{LANE}
    v_and_b32 v4, 7, v{LANE}
    s_lshl_b32 s16, s61, 5
    v_add_u32 v2, s16, v2
    v_mul_u32_u24 v2, 1280, v2
    v_xor_b32 v5, v4, v3
    v_lshl_add_u32 v10, v5, 4, v2
    v_xor_b32 v5, 4, v5
    v_lshl_add_u32 v11, v5, 4, v2
    v_add_u32 v11, 9216, v11
    v_add_u32 v12, 18432, v10
    v_add_u32 v13, 18432, v11
    v_bfe_u32 v4, v{LANE}, 2, 2
    v_xor_b32 v4, v4, v3
    v_and_b32 v5, 3, v{LANE}
    v_cmp_eq_u32 vcc, 3, v4
    s_lshl_b32 s16, s61, 4
    v_add_u32 v8, s16, v3
    v_mul_u32_u24 v8, 3840, v8
    s_mul_i32 s17, s13, 240
    v_mul_u32_u24 v4, 80, v4
    """)
    for half in range(2 if CFG['M16'] else 1):
        if CFG['M16']:
            a(f"v_xor_b32 v9, {2*half}, v5\nv_and_b32 v6, 1, v9\nv_mul_u32_u24 v6, 48, v6\nv_lshrrev_b32 v7, 1, v9\nv_lshl_add_u32 v6, v7, 4, v6")
        else:
            a("v_mov_b32 v9, v5\nv_lshlrev_b32 v6, 4, v5\nv_lshrrev_b32 v7, 1, v5\nv_lshl_add_u32 v6, v7, 4, v6")
        a(f"""
        v_add_u32 v6, v6, v4
        v_min_u32 v7, 2, v9
        v_mul_u32_u24 v7, 80, v7
        v_add_u32 v7, 32, v7
        v_cndmask_b32 v6, v6, v7, vcc
        v_add3_u32 v{14+2*half}, v8, v6, s17
        """)
        if half: a("v_add_u32 v16, 28672, v16")
        a(f"v_add_u32 v{15+2*half}, 14336, v{14+2*half}")
    if not CFG['M16']: a("v_add_u32 v16, 14336, v15\nv_add_u32 v17, 14336, v16")
    a(f"""
    s_lshl_b32 s18, s61, 12
    s_mul_i32 s19, s61, 3072
    s_mul_i32 s16, s12, 163840
    s_lshr_b32 s92, s2, 6
    s_mul_i32 s92, s92, 5
    s_add_u32 s92, s92, 1
    s_lshr_b32 s92, s92, 1
    s_mul_i32 s92, s92, {CFG['RG']}
    s_bfe_u32 s3, s2, 0x30003
    s_and_b32 s3, s3, {CFG['RM']}
    s_mul_i32 s3, s3, {CFG['RR']}
    s_add_u32 s92, s92, s3
    s_and_b32 s3, s2, 1
    s_mul_i32 s3, s3, {CFG['RA']}
    s_add_u32 s92, s92, s3
    s_bfe_u32 s3, s2, 0x20001
    s_mul_i32 s3, s3, {CFG['RB']}
    s_lshr_b32 s3, s3, 1
    s_add_u32 s92, s92, s3
    s_mul_i32 s3, s92, 205
    s_lshr_b32 s3, s3, 11
    s_mul_i32 s3, s3, 10
    s_sub_u32 s92, s92, s3                ; mod 10
    s_mul_i32 s92, s92, {128*min(CFG['ROT'], 1)}
    s_bfe_u32 s93, s2, {hex(0x10000 + (CFG['XORP'] or 3))}
    s_lshl_b32 s93, s93, 7
    s_waitcnt lgkmcnt(0)
    s_mov_b32 s8, s6
    s_mov_b32 s9, s7
    s_mov_b32 s40, s4
    s_mov_b32 s41, s5
    s_add_u32 s4, s4, s16
    s_addc_u32 s5, s5, 0
    """)
    srd(a, 4, 163840); srd(a, 8, 2457600)
    a(f"s_add_u32 s3, s2, s61\ns_cmp_lg_u32 s3, 0\ns_cbranch_scc1 {L('notok0')}\ns_mov_b32 s3, {TOK_OFF}\ns_load_dword s62, s[54:55], s3")
    a.label(L('notok0'))
    if st.on == 7: st()
    for n in range(min(3, CFG['INIT'])):
        f_stage(a, vq, n)
        if st.on == 7: st()
    for n in range(3, CFG['INIT']): f_stage(a, vq, n)
    def late_setup():
        a("s_mov_b32 s44, s38\ns_mov_b32 s45, s39\ns_mov_b32 s56, s54\ns_mov_b32 s57, s55")
        srd(a, 24, 1966080); srd(a, 36, 1966080); srd(a, 40, 2621440); srd(a, 44, 1280); srd(a, 48, 819200)
        srd(a, 52, 256); srd(a, 56, WS_USED); srd(a, 32, 2621440)
        a(f"""
        s_add_u32 s3, s2, s61
        s_cmp_lg_u32 s3, 0
        s_cbranch_scc1 {L('notok')}
        s_waitcnt lgkmcnt(0)
        s_mul_i32 s62, s62, 0x9e3779b1
        s_add_u32 s62, s62, 0x7f4a7c15
        s_cmp_eq_u32 s62, 0
        s_cselect_b32 s62, 1, s62
        v_mov_b32 v2, s62
        v_mov_b32 v3, {TOK_OFF}
        v_mov_b32 v4, 0
        s_mov_b64 exec, 1
        buffer_store_dword v2, v4, s[52:55], 0 offen{SC}
        buffer_store_dword v2, v3, s[56:59], 0 offen{SC}
        s_mov_b64 exec, -1
        """)
        a.label(L('notok'))
        a("s_mul_i32 s17, s13, 192\ns_mul_i32 s16, s61, 49152\ns_add_u32 s17, s17, s16\ns_mov_b32 s16, 0x15555556")
        for j in range(3):
            a(f"""
            v_add_u32 v22, {64*j}, v{LANE}
            v_mul_hi_u32 v23, v22, s16
            v_mul_u32_u24 v24, 12, v23
            v_sub_u32 v22, v22, v24
            v_lshrrev_b32 v24, 2, v23
            v_and_b32 v24, {2 if CFG['M16'] else 0}, v24
            v_xor_b32 v22, v22, v24
            v_mul_u32_u24 v23, 3072, v23
            v_lshl_add_u32 v22, v22, 4, v23
            v_add_u32 v{VW1+j}, s17, v22
            """)
            if j: a(f"v_subrev_u32 v{VW1+j}, {1024*j}, v{VW1+j}")
    if not CFG['LATE']: late_setup()
    free = 1 if CFG['FREE_EARLY'] else 2
    issued = CFG['INIT']
    for n in range(20):
        vq.wait(f"st{n}")
        if st.on == 4 and n in CFG['TSN']: st()
        a("s_barrier")
        if st.on == 4 and n in CFG['TSN']: st()
        if st.on == 2 and n in CFG['TS2'] or st.on == 7 and n < 3: st()
        for _ in range(int(str(CFG['ISS'])[n]) if CFG['ISS'] else 2 if n in (CFG['CA1'], CFG['CA2'], CFG['CA3']) else CFG['CATCH']):
            if issued < 20 and issued <= n - free + NSL:
                f_stage(a, vq, issued); issued += 1
        if st.on == 4 and n in CFG['TSN']: st()
        if n == 0 and CFG['LATE']: late_setup()
        if n == CFG['LATE']:
            fw.tile_coords(a, 62, 63)
            a(f"""
            s_and_b32 s22, s2, 7
            s_lshl_b32 s22, s22, 2
            s_bfe_u32 s23, s2, 0x20003
            s_add_u32 s22, s22, s23               ; head
            s_lshr_b32 s23, s2, 5                 ; qb
            s_mul_i32 s3, s22, {KV_HEAD}
            s_add_u32 s3, s3, {KV_OFF}
            s_add_u32 s28, s56, s3
            s_addc_u32 s29, s57, 0
            s_lshl_b32 s17, s61, 11
            v_lshl_add_u32 v{fw.VKV}, v{LANE}, 4, s17
            s_mov_b32 s94, 160
            s_mov_b32 s3, 0x55555556
            s_lshl_b32 s16, s61, 6
            s_lshl_b32 s90, s61, 9
            s_add_u32 s90, s90, 8192
            s_mul_i32 s91, s61, 3072
            s_add_u32 s91, s91, 10240
            """)
            for j in range(3):
                a(f"""
                v_add_u32 v22, {64*j}, v{LANE}
                v_mul_hi_u32 v23, v22, s3
                v_mul_u32_u24 v24, 3, v23
                v_sub_u32 v22, v22, v24               ; part
                v_add_u32 v23, s16, v23               ; key
                v_lshlrev_b32 v24, 5, v23
                v_lshl_add_u32 v24, v22, 4, v24
                v_add_u32 v24, {10240 - 1024*j}, v24
                v_lshlrev_b32 v23, 4, v23
                v_cmp_eq_u32 vcc, 2, v22
                v_add_u32 v23, {18432 - 1024*j}, v23
                s_nop 0
                v_cndmask_b32 v{VV+j}, v24, v23, vcc
                """)
            srd(a, 28, KV_HEAD)
            fw.lane_setup(a, LANE, 61, WBUF)
            fw.dma_offsets(a, LANE, fw.VD, "w2q" if CFG['M16'] else "w2", 63)
        if n == 1 + CFG['LATE']:
            a(f"""
            s_lshr_b32 s3, s22, 1
            s_add_u32 s16, s3, 16
            s_mul_hi_u32 s16, s16, 0x55555556
            s_add_u32 s21, s3, 32
            s_mul_hi_u32 s21, s21, 0x55555556
            s_mul_hi_u32 s3, s3, 0x55555556
            v_and_b32 v22, 15, v{LANE}
            v_lshlrev_b32 v22, 2, v22
            v_and_b32 v23, 1, v{LANE}
            v_lshlrev_b32 v23, 2, v23
            s_lshl_b32 s3, s3, 8
            s_lshl_b32 s95, s23, 3
            s_add_u32 s3, s3, s95
            v_add_u32 v23, s3, v23
            s_lshl_b32 s16, s16, 8
            s_lshl_b32 s21, s21, 8
            v_add_u32 v24, s16, v22
            v_add_u32 v25, s21, v22
            v_cmp_gt_u32 vcc, 16, v{LANE}
            s_lshr_b32 s3, s62, 1
            s_lshl_b32 s3, s3, 8
            v_cndmask_b32 v25, v25, v24, vcc
            v_cmp_gt_u32 vcc, 32, v{LANE}
            s_add_u32 s3, s3, {F2_OFF}
            v_add_u32 v26, s3, v22
            v_cndmask_b32 v25, v23, v25, vcc
            v_add_u32 v25, {F1_OFF}, v25
            v_and_b32 v22, 31, v{LANE}
            s_lshr_b32 s3, s62, 2
            s_lshl_b32 s3, s3, 8
            s_add_u32 s3, s3, {F3_OFF}
            v_lshl_add_u32 v27, v22, 2, s3
            s_nop 0
            v_cndmask_b32 v31, v27, v26, vcc      ; lanes 0..31: H words, lanes 32..63: poison words
            s_lshl_b32 s3, s22, 6
            s_lshl_b32 s16, s23, 3
            s_add_u32 s3, s3, s16
            s_lshl_b32 s16, s61, 1
            s_add_u32 s3, s3, s16
            s_lshl_b32 s16, s3, 10
            s_add_u32 s16, s16, {QM_OFF}
            v_lshl_add_u32 v28, v{LANE}, 4, s16
            s_lshl_b32 s16, s3, 8
            s_add_u32 s16, s16, {QT_OFF}
            v_lshl_add_u32 v29, v{LANE}, 4, s16
            """)
        if n == CFG['NTOK']:
            vq("tok", f"buffer_load_dword v30, off, s[52:55], 0{SC}")
        if n == CFG['NTOK'] + NSL + 1:
            assert "tok" not in vq.q
            a(f"v_readfirstlane_b32 s60, v30\ns_mov_b32 s3, {CFG['SPIN']}\ns_nop 1\ns_cmp_lg_u32 s60, 0\ns_cbranch_scc1 {L('tok_ok')}")
            a.label(L('tok'))
            a(f"""
            buffer_load_dword v30, off, s[52:55], 0{SC}
            s_sub_u32 s3, s3, 1
            s_cmp_eq_u32 s3, 0
            s_cbranch_scc1 {L('tok_ok')}
            s_waitcnt vmcnt(0)
            v_readfirstlane_b32 s60, v30
            s_nop 1
            s_cmp_eq_u32 s60, 0
            s_cbranch_scc1 {L('tok')}
            """)
            a.label(L('tok_ok'))
        if n == CFG['NINIT']:
            a(f"v_mov_b32 v22, {VOTE}\nv_mov_b32 v23, 0\nds_write_b32 v22, v23\nv_and_b32 v22, 3, v{LANE}\nv_lshlrev_b32 v22, 8, v22\nv_add_u32 v22, {CONST_LDS}, v22\nv_mov_b32 v24, 0x3f803f80\nv_mov_b32 v23, 0x3f80\nds_write_b32 v22, v24\nds_write_b32 v22, v23 offset:4\ns_waitcnt lgkmcnt(0)")
        if n == CFG['NF1']:
            a(f"s_lshl_b32 s16, s13, 8\ns_lshl_b32 s3, s12, 2\ns_add_u32 s16, s16, s3\ns_add_u32 s16, s16, {F1_OFF}")
            publish(a, vq, L, "pub1", 16)
        def kv0q():
            kv_dma(a, vq, "kv0", KV_A, 0)
            a(f"s_lshl_b32 s3, s61, 11\ns_add_u32 m0, s3, {QM_LDS}\ns_nop 0")
            vq("kv0", f"buffer_load_dwordx4 v28, s[56:59], 0 offen{SC} lds")
            vq("kv0", f"buffer_load_dwordx4 v28, s[56:59], 0 offen offset:1024{SC} lds")
            a(f"s_lshl_b32 s3, s61, 9\ns_add_u32 m0, s3, {QT_LDS}\ns_mov_b32 exec_hi, 0")
            vq("kv0", f"buffer_load_dwordx4 v29, s[56:59], 0 offen{SC} lds")
            a("s_mov_b64 exec, -1")
        if CFG['GSH'] and n == CFG['EARLY'] - 2:
            a(f"""
            s_cmp_lg_u32 s61, 3
            s_cbranch_scc1 {L('nog0')}
            v_lshrrev_b32 v36, 3, v{LANE}
            v_and_b32 v37, 7, v{LANE}
            v_lshlrev_b32 v37, 4, v37
            v_mul_u32_u24 v38, 1280, v36
            v_add_u32 v38, v38, v37
            s_lshl_b32 s3, s12, 4
            s_add_u32 s3, s3, s13
            s_mul_i32 s10, s3, {8*1280}
            s_lshl_b32 s11, s3, 5
            s_add_u32 s11, s11, {G_OFF}
            """)
            for i in range(10):
                a(f"buffer_load_dwordx4 {vr(40+4*i,4)}, v37, s[44:47], 0 offen offset:{128*i}")
                a(f"buffer_load_dwordx4 {vr(80+4*i,4)}, v38, s[40:43], s10 offen offset:{128*i}")
            a.label(L('nog0'))
        if CFG['EARLY'] and n == CFG['EARLY'] - 1:
            vq("p1", f"buffer_load_dword v24, v25, s[56:59], 0 offen{SC}")
        if CFG['EARLY'] and n == CFG['EARLY']:
            vq.wait("p1")
            keep = list(vq.q)
            a(f"""
            v_cmp_ne_u32 vcc, s60, v24
            s_mov_b32 s89, 0
            s_nop 2
            s_and_b32 s3, vcc_lo, 0x30003
            s_or_b32 s3, s3, vcc_hi
            s_cbranch_scc1 {L('notyet')}
            s_mov_b32 s89, 1
            """)
            kv0q()
            a.label(L('notyet'))
            vq.q = keep
            if CFG['GSH']:
                a(f"s_cmp_lg_u32 s61, 3\ns_cbranch_scc1 {L('nog1')}\nv_mov_b32 v38, 0\nv_mov_b32 v39, 0")
                for i in range(10):
                    for r in range(4): a(f"v_dot2_f32_bf16 v{38+(r&1)}, v{80+4*i+r}, v{40+4*i+r}, v{38+(r&1)}")
                a(f"""
                v_lshlrev_b32 v36, 2, v36
                s_nop 1
                v_add_f32 v38, v38, v39
                s_nop 1
                v_add_f32_dpp v38, v38, v38 quad_perm:[1,0,3,2] row_mask:0xf bank_mask:0xf
                s_nop 1
                v_add_f32_dpp v38, v38, v38 quad_perm:[2,3,0,1] row_mask:0xf bank_mask:0xf
                s_nop 1
                v_add_f32_dpp v38, v38, v38 row_half_mirror row_mask:0xf bank_mask:0xf
                v_mul_f32 v38, 0xbfb8aa3b, v38
                v_exp_f32 v38, v38
                s_mov_b32 exec_lo, 0x01010101
                v_add_f32 v38, 1.0, v38
                v_rcp_f32 v38, v38
                s_mov_b32 exec_hi, 0x01010101
                s_nop 0
                buffer_store_dword v38, v36, s[56:59], s11 offen{SC}
                s_mov_b64 exec, -1
                """)
                a.label(L('nog1'))
        if n == CFG['NPOLL']:
            poll(a, vq, L, "poll1", 25)
            if st.on == 2: st()
            if CFG['EARLY']: a(f"s_cmp_eq_u32 s89, 1\ns_cbranch_scc1 {L('havekv0')}")
            kv0q()
            if CFG['EARLY']: a.label(L('havekv0'))
        if n == max(CFG['NPOLL'], 17): kv_dma(a, vq, "kv1", KV_B, 1)
        if n == max(CFG['NPOLL'], 18): kv_dma(a, vq, "kv2", KV_C, 2)
    assert issued == 20
    a(f"""
    v_mov_b32 v{fw.FT+2}, v{31 if CFG['TAG'] and not CFG['FPOIS'] else 26}
    v_mov_b32 v{fw.VD+5}, v27
    s_lshl_b32 s18, s62, 6
    s_lshl_b32 s19, s61, 4
    s_add_u32 s18, s18, s19               ; first token of this wave
    s_lshr_b32 s13, s18, 5
    s_mul_i32 s4, s13, 98304
    s_add_u32 s4, s4, {H_OFF}
    s_and_b32 s14, s61, {CFG['T32']}
    s_lshl_b32 s3, s14, 13
    s_add_u32 s4, s4, s3
    v_xor_b32 v153, 0x100, v{fw.VH}
    s_mul_i32 s5, s13, 40960
    s_add_u32 s5, s5, {O_OFF}
    s_mul_i32 s6, s61, {2*fw.STEP}
    s_mul_i32 s7, s61, {64*1280}
    s_lshl_b32 s8, s12, 8
    s_add_u32 s8, s8, {F2_OFF}
    s_lshr_b32 s3, s2, 6
    s_bfe_u32 s9, s2, 0x20001
    s_lshl_b32 s9, s9, 2
    s_add_u32 s9, s9, s3
    s_lshl_b32 s9, s9, 2
    s_add_u32 s8, s8, s9
    s_lshl_b32 s9, s23, 8
    s_lshl_b32 s3, s22, 2
    s_add_u32 s9, s9, s3
    s_add_u32 s9, s9, {F3_OFF}
    """)
    F2A, F3A = fw.FT+2, fw.VD+5
    g = fw.FT
    if CFG['GLATE']: XR = [80+4*i for i in range(8)] + [20, 24], [112+4*i for i in range(8)] + [28, 32]
    else: XR = [80+4*i for i in range(10)], [120+4*i for i in range(6)] + [20+4*i for i in range(4)]
    GA = (fw.FT+4, fw.FT+5) if CFG['GLATE'] else (g, g+1)
    def gate_addr():
        a(f"""
        v_lshrrev_b32 v{GA[0]}, 3, v{LANE}
        v_and_b32 v{GA[1]}, 7, v{LANE}
        v_lshlrev_b32 v{GA[1]}, 4, v{GA[1]}
        v_mul_u32_u24 v{GA[0]}, 1280, v{GA[0]}
        v_add_u32 v{GA[0]}, v{GA[0]}, v{GA[1]}
        s_mul_i32 s10, s18, 1280
        """)
    gw = lambda i: vq("g0", f"buffer_load_dwordx4 {vr(40+4*i,4)}, v{GA[1]}, s[44:47], 0 offen offset:{128*i}")
    gx = lambda k, i: vq(f"g{k}", f"buffer_load_dwordx4 {vr(XR[k][i],4)}, v{GA[0]}, s[40:43], s10 offen offset:{128*i}")
    def gate():
        gate_addr()
        for i in range(10): gw(i); gx(0, i)
        a(f"s_add_u32 s10, s10, {8*1280}")
        for i in range(10): gx(1, i)
    def gate_math():
        for r in range(4): a(f"v_mov_b32 v{36+r}, 0")
        for grp in range(2):
            vq.wait(f"g{grp}")
            for i in range(10):
                for r in range(4): a(f"v_dot2_f32_bf16 v{36+2*grp+(r&1)}, v{XR[grp][i]+r}, v{40+4*i+r}, v{36+2*grp+(r&1)}")
        a(f"""
        v_and_b32 v{g}, 1, v{LANE}
        v_cmp_eq_u32 vcc, 1, v{g}
        v_add_f32 v36, v36, v37
        v_add_f32 v38, v38, v39
        v_and_b32 v{g}, 7, v{LANE}
        v_bfe_u32 v{g+1}, v{LANE}, 3, 1
        v_add_f32_dpp v36, v36, v36 quad_perm:[1,0,3,2] row_mask:0xf bank_mask:0xf
        v_add_f32_dpp v38, v38, v38 quad_perm:[1,0,3,2] row_mask:0xf bank_mask:0xf
        v_lshl_add_u32 v{g}, v{g}, 3, v{g+1}
        v_add_f32_dpp v36, v36, v36 quad_perm:[2,3,0,1] row_mask:0xf bank_mask:0xf
        v_add_f32_dpp v38, v38, v38 quad_perm:[2,3,0,1] row_mask:0xf bank_mask:0xf
        v_lshlrev_b32 v{g}, 2, v{g}
        v_add_f32_dpp v36, v36, v36 row_half_mirror row_mask:0xf bank_mask:0xf
        v_add_f32_dpp v38, v38, v38 row_half_mirror row_mask:0xf bank_mask:0xf
        s_nop 0
        v_cndmask_b32 v36, v36, v38, vcc
        ds_bpermute_b32 v36, v{g}, v36
        s_waitcnt lgkmcnt(0)
        v_mul_f32 v{g}, 0xbfb8aa3b, v36
        v_exp_f32 v{g}, v{g}
        s_nop 0
        v_add_f32 v{g}, 1.0, v{g}
        v_rcp_f32 v{fw.VG}, v{g}
        s_nop 0
        """)
    for r in range(40 if CFG['T32'] else 20): a(f"v_mov_b32 v{r}, 0")
    vq.wait("kv0"); a(f"s_setprio {CFG['FPRIO']}\ns_barrier")
    if st.on in (2, 6): st()
    if not CFG['GLATE'] and not CFG['GSH']: gate()
    vq.wait("kv1")
    if st.on == 6: st()
    a("s_barrier")
    if st.on == 6: st()
    a("")
    publish(a, vq, L, "pub2", 8)
    if CFG['TAG'] and not CFG['FPOIS']: publish(a, vq, L, "pub2b", 9)
    def w2_ops(m):
        ops = []
        for i in range(2):
            for j in range(5):
                def f(i=i, j=j):
                    a(f"s_add_u32 m0, s6, {WBUF + (m & 1)*40960 + i*fw.STEP + 1024*j}\ns_nop 0")
                    vq(f"w{m}", f"buffer_load_dwordx4 v{fw.VD+j}, s[36:39], s7 offen{' nt' if CFG['NTW2'] else ''} lds")
                    if j == 4: a(f"s_add_u32 s7, s7, {32*1280 if i == 0 else (256-32)*1280}")
                ops.append(f)
        return ops
    def h_ops(m):
        ops = []
        for i in range(8):
            def f(i=i):
                if CFG['T32']:
                    vq(f"h{m}", f"buffer_load_dwordx4 {vr(fw.HB[m&1]+4*i,4)}, v{153 if i & 1 else fw.VH}, s[56:59], s4 offen offset:{2048*((i>>1)&1)}{SC}")
                    if i == 3: a("s_add_u32 s4, s4, 4096")
                    if i == 7: a("s_add_u32 s4, s4, 12288")
                    return
                vq(f"h{m}", f"buffer_load_dwordx4 {vr(fw.HB[m&1]+4*i,4)}, v{fw.VH}, s[56:59], s4 offen offset:{2048*(i&1)}{SC}")
                if i & 1: a("s_add_u32 s4, s4, 4096")
            ops.append(f)
        return ops
    def wo_ops(steps, voff, lds0, src0, srcstep):
        ops = []
        for i in range(steps):
            for j in range(5):
                def f(i=i, j=j):
                    if j == 0: a(f"s_add_u32 s7, s11, {src0 + i*srcstep}")
                    a(f"s_add_u32 m0, s6, {lds0 + i*fw.STEP + 1024*j}\ns_nop 0")
                    vq("wo", f"buffer_load_dwordx4 v{voff+j}, s[48:51], s7 offen lds")
                ops.append(f)
        return ops
    for f in w2_ops(0): f()
    if not CFG['GLATE'] and not CFG['GSH']: gate_math()
    poll(a, vq, L, "poll2", F2A)
    if CFG['GSH']:
        a(f"v_and_b32 v{g}, 15, v{LANE}\nv_lshlrev_b32 v{g}, 2, v{g}\ns_lshl_b32 s3, s18, 2\ns_add_u32 s3, s3, {G_OFF}")
        vq("h0", f"buffer_load_dword v{fw.VG}, v{g}, s[56:59], s3 offen{SC}")
    for f in h_ops(0): f()
    if st.on in (3, 6): st()
    a("s_barrier")
    if st.on in (3, 6): st()
    a("")
    slots = [KV_A, KV_B, KV_C]
    def poison():
        a(f"""
        s_lshl_b32 s3, s23, 3
        s_lshl_b32 s10, s61, 1
        s_add_u32 s3, s3, s10
        s_mul_i32 s3, s3, 40960
        s_add_u32 s3, s3, {O_OFF}
        s_lshl_b32 s10, s22, 10
        s_add_u32 s10, s10, s3
        s_add_u32 s11, s10, 40960
        v_lshlrev_b32 v154, 4, v{LANE}
        v_mov_b32 v156, -1
        v_mov_b32 v157, -1
        v_mov_b32 v158, -1
        v_mov_b32 v159, -1
        """)
        vq("po", f"buffer_store_dwordx4 v[156:159], v154, s[56:59], s10 offen{SC}")
        vq("po", f"buffer_store_dwordx4 v[156:159], v154, s[56:59], s11 offen{SC}")
        a(f"""
        s_mov_b32 s11, 40960
        v_bfe_u32 v155, v{LANE}, 4, 1
        v_and_b32 v154, 0xff, v154
        v_mad_u32_u24 v155, v155, s11, v154
        s_lshl_b32 s10, s22, 8
        s_add_u32 s10, s10, s3
        s_add_u32 s10, s10, 32768
        s_mov_b32 exec_hi, 0
        """)
        vq("po", f"buffer_store_dwordx4 v[156:159], v155, s[56:59], s10 offen{SC}")
        a("s_mov_b64 exec, -1")
    TO = 80 if CFG['GSH'] else 35
    def wo_tail():
        a(f"s_mul_i32 s11, s61, {160*1280}\ns_mul_i32 s6, s61, {fw.STEP}")
        fw.dma_offsets(a, LANE, TO, "tail", 63)
        for f in wo_ops(1, TO, KV_C, 0, 0): f()
    for c in range(2, 8):
        m = c - 2
        side = []
        if c <= 6: side.append(lambda c=c: kv_dma(a, vq, f"kv{c+1}", slots[(c+1) % 3], c+1))
        if CFG['TAG'] and CFG['FPOIS']:
            if c == 4:
                assert "po" not in vq.q
                publish(a, vq, L, "pub2b", 9)
            if c == 6: poll(a, vq, L, "poll2b", F3A)
        if m+1 <= 5 and CFG['NOFFN'] in (0, 1, 3, 5, 6): side += w2_ops(m+1)
        if m+1 <= 5 and CFG['NOFFN'] in (0, 1, 4, 5, 6): side += h_ops(m+1)
        if CFG['TAG'] and CFG['FPOIS'] and c == 2: side.append(poison)
        if c == 7:
            fw.dma_offsets(a, LANE, fw.VD, "main", 63)
            a(f"s_mul_i32 s11, s61, {2*40*1280}")
            side += wo_ops(2, fw.VD, WBUF, 0, 40*1280) + [wo_tail]
            if CFG['GLATE'] and not CFG['GSH']: side += [gate_addr] + [lambda i=i: gx(0, i) for i in range(10)]
        a(f"s_mul_i32 s3, s14, {4*fw.STEP}\ns_add_u32 s3, s3, {(m&1)*40960}\nv_add_u32 v{fw.A1}, s3, v{fw.LA1}\nv_add_u32 v{fw.A2}, s3, v{fw.LA2}")
        vq.wait(f"h{m}")
        if CFG['NOFFN'] in (1, 2, 3, 4) or (c == 7 and CFG['DEFER']):
            for f in side: f()
        elif CFG['T32']: gemm2(a, [fw.HB[m&1]+8*i for i in range(4)], [i*fw.STEP for i in range(4)], side=side, exp=CFG['NOFFN'])
        else: gemm(a, fw.ACCB, [fw.HB[m&1]+4*i for i in range(8)], [i*fw.STEP for i in range(8)], side=side, exp=CFG['NOFFN'])
        if st.on == 3 and c in (2, 3, 4): st()
        if c < 7:
            vq.wait(f"kv{c+1}", f"w{m+1}")
            if st.on == 3 and c in (2, 3, 4): st()
            a("s_barrier")
            if st.on == 3 and c in (2, 3, 4) or st.on == 6: st()
    a("s_barrier")
    if st.on in (6, 8): st()
    W2A, W2B = (KV_B, KV_A) if CFG['DEFER'] else (WBUF + 40960, WBUF + 40960 + 4*fw.STEP)
    def wo_q(lds, step0):
        a(f"s_mul_i32 s11, s61, {40*1280}\ns_mul_i32 s6, s61, {fw.STEP}")
        for f in wo_ops(1, fw.VD, lds, step0*40*1280, 0): f()
    assert not CFG['DEFER']
    wo_q(W2A, 8); wo_q(W2B, 12)
    if CFG['GLATE'] and not CFG['GSH']:
        a(f"s_add_u32 s10, s10, {8*1280}")
        for i in range(10): gw(i); gx(1, i)
    a(f"""
    v_mov_b32 v{fw.A1}, {VOTE}
    """)
    if st.on == 8: st()
    a("s_barrier                              ; BX")
    if st.on == 8: st()
    a("s_barrier                              ; BV")
    if st.on == 8: st()
    a(f"""
    ds_read_b32 v{fw.A1}, v{fw.A1}
    s_waitcnt lgkmcnt(0)
    v_readfirstlane_b32 s12, v{fw.A1}
    """)
    if CFG['GLATE'] and not CFG['GSH']: gate_math()
    a(f"""
    v_sub_f32 v{g+3}, 1.0, v{fw.VG}
    v_lshrrev_b32 v{g}, 4, v{LANE}
    v_lshlrev_b32 v{g}, 9, v{g}
    v_and_b32 v{g+1}, 0x1ff, v{fw.VH}
    v_lshrrev_b32 v{g+1}, 1, v{g+1}
    v_add_u32 v{g}, v{g}, v{g+1}
    v_mov_b32 v{fw.A1}, v{fw.LA1}
    v_mov_b32 v{fw.A2}, v{fw.LA2}
    """)
    if not CFG['T32']:
        for r in range(20): a(f"v_mul_f32 v{fw.ACCB+r}, v{fw.ACCB+r}, v{g+3}")
    a(f"""
    s_cmp_eq_u32 s12, 0
    s_cbranch_scc1 {L('p4')}
    v_mov_b32 v{fw.VG+0 if False else 41}, v{g}
    s_mov_b32 s15, 0
    s_mov_b32 s19, 8
    s_waitcnt vmcnt(0)
    """)
    pending = list(vq.q)
    a.label(L('lmax'))
    a("s_barrier")
    kv_dma(a, vq, "x", KV_B, None)
    a(f"s_waitcnt vmcnt(0)\ns_barrier\ns_add_u32 s15, s15, {CHUNK}\ns_sub_u32 s19, s19, 1\ns_cmp_lg_u32 s19, 0\ns_cbranch_scc1 {L('lmax')}\ns_barrier")
    for c in range(3): kv_dma(a, vq, "x", slots[c], c)
    a("s_waitcnt vmcnt(0)\ns_barrier\ns_barrier\ns_barrier")
    for c in range(2, 7):
        kv_dma(a, vq, "x", slots[(c+1) % 3], c+1)
        a("s_waitcnt vmcnt(0)\ns_barrier")
    wo_tail()
    a(f"v_mov_b32 v{g}, v41\ns_barrier\ns_barrier")
    if CFG['DEFER']: wo_q(W2A, 8)
    a("s_waitcnt vmcnt(0)\ns_barrier")
    a.label(L('p4'))
    if CFG['T32']:
        vq.q = pending
        return p4_t32(a, L, st, vq)
    for r in range(20): a(f"v_mov_b32 v{fw.ACCA+r}, 0")
    vq.q = pending
    if CFG['DEFER']: wo_q(W2B, 12)
    if st.on in (6, 8): st()
    if st.on == 2: st.n = 9; st()
    if not CFG['TAG']:
        publish(a, vq, L, "pub3", 9)
        a(f"v_mov_b32 v{fw.VKV}, v{F3A}")
        poll(a, vq, L, "poll3", fw.VKV)
    elif CFG['SENT']:
        a(f"v_and_b32 v40, 31, v{LANE}\ns_and_b32 s3, s61, 1\ns_lshl_b32 s3, s3, 7\ns_add_u32 s3, s3, 32768\nv_lshl_add_u32 v40, v40, 8, s3")
        poll(a, vq, L, "poll3", 40, soff="s5", cmp="v_cmp_eq_u32 vcc, -1,")
    if st.on in (2, 8): st()
    a(f"v_mov_b32 v{fw.VKV}, v{g}")
    def o_loads(i, so):
        if i < 16: return [f"buffer_load_dwordx4 {vr(80+4*i,4)}, v{fw.VH}, s[56:59], s{so} offen offset:{2048*(i&1)}{SC}"]
        return [f"buffer_load_dwordx2 {vr(80+4*i+2*u,2)}, v{fw.VKV}, s[56:59], s{so} offen offset:{2048*(i&1)+256*u}{SC}" for u in range(2)]
    if CFG['P4ROT']:
        for qd in range(4):
            a(f"s_add_u32 s3, s63, {qd}\ns_and_b32 s3, s3, 3\ns_mul_i32 s{24+qd}, s3, {4*fw.STEP}\ns_lshl_b32 s3, s3, 13\ns_add_u32 s{28+qd}, s3, s5")
    def o_src(i):
        if CFG['P4ROT'] and i < 16: a(f"s_add_u32 s4, s{28 + (i >> 2)}, {4096*((i >> 1) & 1)}")
        else: a(f"s_add_u32 s4, s5, {4096*(i >> 1)}")
    for i in range(20):
        if not i & 1: o_src(i)
        for t in o_loads(i, 4): vq(f"o{i}", t)
    vq.wait("wo"); a("s_barrier")
    batches = {0: 2, 2: 6, 6: 12, 12: 20} if CFG['BAT'] == 0 else {0: 2, 2: 5, 5: 9, 9: 13, 13: 17, 17: 20}
    retry = []
    a(f"s_mov_b32 s10, {CFG['SPIN']}")
    def pre(i):
        if not CFG['TAG']: vq.wait(f"o{i}"); return
        if i not in batches: return
        e = batches[i]
        vq.wait(f"o{e-1}")
        a.label(L(f"chk{i}"))
        R = list(range(80+4*i, 80+4*e))
        tt = fw.AF[(i+1) & 1]
        a(f"v_max3_u32 v{tt}, v{R[0]}, v{R[1]}, v{R[2]}")
        for k in range(3, len(R)-1, 2): a(f"v_max3_u32 v{tt}, v{tt}, v{R[k]}, v{R[k+1]}")
        a(f"v_max_u32 v{tt}, v{tt}, v{R[-1]}\nv_cmp_eq_u32 vcc, -1, v{tt}\ns_nop 4\ns_cbranch_vccnz {L(f'retry{i}')}")
        a.label(L(f"ok{i}"))
        if st.on == 8 and i in (0, 9, 17): st(); a("s_waitcnt lgkmcnt(0)")
        retry.append((i, e))
    def sw(off):
        def f():
            a(f"v_add_u32 v{fw.A1}, {off & 0xffffffff}, v{fw.LA1}\nv_add_u32 v{fw.A2}, {off & 0xffffffff}, v{fw.LA2}"); return 0
        return f
    offs = [i*fw.STEP for i in range(8)]
    for base in (W2A, W2B, KV_C): offs += [sw(base - WBUF)] + [i*fw.STEP for i in range(1, 4)]
    if CFG['P4ROT']:
        def swr(qd):
            def f():
                a(f"v_add_u32 v{fw.A1}, s{24+qd}, v{fw.LA1}\nv_add_u32 v{fw.A2}, s{24+qd}, v{fw.LA2}"); return 0
            return f
        offs = sum([[swr(qd)] + [i*fw.STEP for i in range(1, 4)] for qd in range(4)], []) + offs[16:]
    gemm(a, fw.ACCA, [80+4*i for i in range(20)], offs, pre=pre)
    if st.on in (2, 8): st()
    a("s_nop 1")
    fw.final_store(a, LANE, 32, 18, 63, ['', ' sc1', ' nt', ' sc0 sc1'][CFG['OUTSC']])
    a(f"s_branch {L('end')}")
    for i, e in retry:
        a.label(L(f"retry{i}"))
        a(f"s_sub_u32 s10, s10, 1\ns_cmp_eq_u32 s10, 0\ns_cbranch_scc1 {L(f'ok{i}')}")
        for k in range(i, e):
            if k == i or not k & 1: o_src(k)
            for t in o_loads(k, 4): a(t)
        a(f"s_waitcnt vmcnt(0)\ns_branch {L(f'chk{i}')}")

def p4_t32(a, L, st, vq):
    g = fw.FT; XB, XA = 0, 20480
    if st.on in (6, 8): st()
    if st.on == 2: st.n = 9; st()
    a(f"""
    s_mul_i32 s24, s61, 5120
    s_xor_b32 s25, s61, 1
    s_mul_i32 s25, s25, 5120
    v_lshlrev_b32 v60, 4, v{LANE}
    v_add_u32 v{fw.VKV}, s25, v60
    v_add_u32 v60, s24, v60
    v_sub_f32 v61, 1.0, v{fw.VG}
    """)
    for u in range(5): a(f"ds_write_b128 v60, {vr(20+4*u,4)} offset:{XB+1024*u}")
    vq.wait("wo"); a("s_waitcnt lgkmcnt(0)\ns_barrier")
    for u in range(5): a(f"ds_read_b128 {vr(40+4*u,4)}, v{fw.VKV} offset:{XB+1024*u}")
    a(f"""
    v_and_b32 v62, 15, v{LANE}
    s_lshl_b32 s3, s14, 12
    s_add_u32 s3, s3, 32768
    v_lshl_add_u32 v62, v62, 8, s3        ; look-out word: first token of every head of this k half
    s_lshl_b32 s3, s14, 14
    s_add_u32 s26, s5, s3
    s_lshl_b32 s3, s14, 12
    s_add_u32 s27, s5, s3
    s_add_u32 s27, s27, 32768
    s_mul_i32 s28, s14, {8*fw.STEP}
    s_mul_i32 s29, s14, {2*fw.STEP}
    s_add_u32 s29, s29, {(KV_C - WBUF) & 0xffffffff}
    s_waitcnt lgkmcnt(0)
    """)
    for r in range(20): a(f"v_add_f32 v{r}, v{r}, v{40+r}")
    for r in range(20): a(f"v_mul_f32 v{40+r}, v{r}, v61")
    for u in range(5): a(f"ds_write_b128 v{fw.VKV}, {vr(40+4*u,4)} offset:{XB+1024*u}")
    for r in range(40): a(f"v_mov_b32 v{r}, 0")
    a(f"v_add_u32 v{fw.A1}, s28, v{fw.LA1}\nv_add_u32 v{fw.A2}, s28, v{fw.LA2}\nv_mov_b32 v63, v{g}\nv_xor_b32 v64, 0x80, v{g}\nv_mov_b32 v65, v153\ns_waitcnt lgkmcnt(0)")
    poll(a, vq, L, "poll3", 62, soff="s5", cmp="v_cmp_eq_u32 vcc, -1,", thr=CFG['THR'])
    if st.on in (2, 8): st()
    def o_loads(i, retry=False):
        T_ = []
        for j in range(2):
            if i < 8: T_.append(f"buffer_load_dwordx4 {vr(80+8*i+4*j,4)}, v{(fw.LA1 if retry else 65) if j else fw.VH}, s[56:59], s4 offen offset:{2048*(i&1)}{SC}")
            else: T_ += [f"buffer_load_dwordx2 {vr(80+8*i+4*j+2*u,2)}, v{(40 if retry else 63)+j}, s[56:59], s27 offen offset:{2048*(i&1)+256*u}{SC}" for u in range(2)]
        return T_
    for i in range(10):
        if i < 8 and not i & 1: a(f"s_add_u32 s4, s26, {4096*(i >> 1)}")
        for t in o_loads(i): vq(f"o{i}", t)
    batches = [{0: 1, 1: 3, 3: 5, 5: 7, 7: 10}, {0: 1, 1: 2, 2: 3, 3: 4, 4: 5, 5: 6, 6: 7, 7: 8, 8: 10}, {0: 2, 2: 4, 4: 6, 6: 8, 8: 10}][CFG['BAT2']]
    retry = []
    a(f"s_mov_b32 s10, {CFG['SPIN']}")
    def pre(i):
        if i not in batches: return
        e = batches[i]
        vq.wait(f"o{e-1}")
        a.label(L(f"chk{i}"))
        R = list(range(80+8*i, 80+8*e)); tt = fw.AF[(i+1) & 1]
        a(f"v_max3_u32 v{tt}, v{R[0]}, v{R[1]}, v{R[2]}")
        for k in range(3, len(R)-1, 2): a(f"v_max3_u32 v{tt}, v{tt}, v{R[k]}, v{R[k+1]}")
        a(f"v_max_u32 v{tt}, v{tt}, v{R[-1]}\nv_cmp_eq_u32 vcc, -1, v{tt}\ns_nop 4\ns_cbranch_vccnz {L(f'retry{i}')}")
        a.label(L(f"ok{i}"))
        if st.on == 8 and i in (0, 5, 7): st(); a("s_waitcnt lgkmcnt(0)")
        retry.append((i, e))
    def swt():
        a(f"v_add_u32 v{fw.A1}, s29, v{fw.LA1}\nv_add_u32 v{fw.A2}, s29, v{fw.LA2}"); return 0
    gemm2(a, [80+8*i for i in range(10)], [i*fw.STEP for i in range(8)] + [swt, fw.STEP], pre=pre)
    if st.on in (2, 8, 9): st()
    t = 100
    for u in range(5): a(f"ds_read_b128 {vr(40+4*u,4)}, v{fw.VKV} offset:{XB+1024*u}")
    a(f"""
    v_lshlrev_b32 v{t+2}, 4, v{LANE}
    v_add_u32 v{t+2}, s24, v{t+2}
    v_and_b32 v{t}, 15, v{LANE}
    v_lshrrev_b32 v{t+1}, 4, v{LANE}
    v_mul_u32_u24 v{t}, 1280, v{t}
    v_mad_u32_u24 v{t}, v{t+1}, 40, v{t}
    s_mul_i32 s3, s18, 1280
    s_mul_i32 s95, s63, 160
    s_add_u32 s3, s3, s95
    """)
    for u in range(5): a(f"ds_write_b128 v{t+2}, {vr(20+4*u,4)} offset:{XA+1024*u}")
    a("s_waitcnt lgkmcnt(0)")
    if st.on == 9: st()
    a("s_barrier")
    if st.on == 9: st()
    for u in range(5): a(f"ds_read_b128 {vr(60+4*u,4)}, v{fw.VKV} offset:{XA+1024*u}")
    for r in range(20): a(f"v_fma_f32 v{40+r}, v{r}, v{fw.VG}, v{40+r}")
    a("s_waitcnt lgkmcnt(0)")
    for r in range(20): a(f"v_fma_f32 v{40+r}, v{60+r}, v{fw.VG}, v{40+r}")
    for r in range(10): a(f"v_cvt_pk_bf16_f32 v{r}, v{40+2*r}, v{40+2*r+1}")
    if st.on == 9: st()
    a(f"""
    buffer_store_dwordx4 v[0:3], v{t}, s[32:35], s3 offen
    buffer_store_dwordx4 v[4:7], v{t}, s[32:35], s3 offen offset:16
    buffer_store_dwordx2 v[8:9], v{t}, s[32:35], s3 offen offset:32
    """)
    if st.on == 9: st()
    a(f"""
    s_branch {L('end')}
    """)
    for i, e in retry:
        a.label(L(f"retry{i}"))
        tt = fw.AF[(i+1) & 1]
        a(f"""
        s_sub_u32 s10, s10, 1
        s_cmp_eq_u32 s10, 0
        s_cbranch_scc1 {L(f'ok{i}')}
        v_xor_b32 v{tt+2}, 0x100, v{fw.VH}
        v_lshrrev_b32 v{tt}, 4, v{LANE}
        v_lshlrev_b32 v{tt}, 9, v{tt}
        v_and_b32 v{tt+1}, 0x1ff, v{fw.VH}
        v_lshrrev_b32 v{tt+1}, 1, v{tt+1}
        v_add_u32 v{tt}, v{tt}, v{tt+1}
        v_xor_b32 v{tt+1}, 0x80, v{tt}
        """)
        for k in range(i, e):
            if k < 8 and (k == i or not k & 1): a(f"s_add_u32 s4, s26, {4096*(k >> 1)}")
            for t_ in o_loads(k, True): a(t_.replace(f"v{fw.LA1},", f"v{tt+2},").replace("v40,", f"v{tt},").replace("v41,", f"v{tt+1},"))
        a(f"s_waitcnt vmcnt(0)\ns_branch {L(f'chk{i}')}")

def gen(name="gated_mix__mha_block__dense_activation_mish__prompt_kernel", ts=0):
    dbg = ts == 5
    spin = ts - 100 if ts > 100 else 0
    if dbg or spin: ts = 2
    a = Asm(); st = Stamps(a, ts, 64, rt=(ts >= 2))
    L = lambda s: f"L_{s}"
    a(f"s_cmp_ge_u32 s2, 256\ns_cbranch_scc1 {L('exit')}\ns_load_dwordx4 s[4:7], s[0:1], 0")
    st()
    if CFG['CODEPF']:
        a("s_getpc_b64 s[38:39]")
        a.label(L('pc'))
        a(f"""
        s_lshr_b32 s3, s2, 3
        s_mul_i32 s3, s3, 1152
        v_lshrrev_b32 v1, 6, v0
        v_and_b32 v2, 63, v0
        v_lshlrev_b32 v3, 1, v2
        v_and_b32 v3, 64, v3
        v_mul_u32_u24 v4, 96, v1
        v_add3_u32 v3, v3, v4, s3
        v_lshlrev_b32 v4, 6, v2
        v_lshl_add_u32 v4, v1, 8, v4
        v_cmp_gt_u32 vcc, 4, v2
        s_and_b32 s12, s2, 1
        s_lshl_b32 s12, s12, 3
        v_cndmask_b32 v3, v3, v4, vcc
        v_min_u32 v3, {L('exit')}-{L('pc')}, v3
        global_load_dword v{PFD+7}, v3, s[38:39]
        """)
    else: a("v_lshrrev_b32 v1, 6, v0\ns_and_b32 s12, s2, 1\ns_lshl_b32 s12, s12, 3")
    a(f"""
    s_bfe_u32 s13, s2, 0x30003
    v_readfirstlane_b32 s14, v1
    s_add_u32 s12, s12, s13               ; rb
    s_bfe_u32 s13, s2, 0x20001
    s_lshl_b32 s13, s13, 2
    s_lshr_b32 s15, s2, 6
    s_add_u32 s13, s13, s15               ; grp
    s_mov_b32 s101, s14
    s_cmp_lt_u32 s14, 8
    s_cbranch_scc1 {L('awave')}
    """)
    on = st.on
    st.on = on if on >= 2 else 0
    f_waves(a, L, st)
    nf = st.n
    a(f"s_branch {L('end')}")
    a.label(L('awave'))
    st.on = (on == 1); st.n = 1
    a_waves(a, L, st)
    a.label(L('end'))
    if on: a(f"s_cmp_lt_u32 s88, 8\ns_cselect_b32 s14, s14, s88" if False else "s_mov_b32 s14, s101")
    if on:
        st.on = on
        if on >= 2: st.n = nf
        a("s_waitcnt vmcnt(0)")
        st()
        if spin:
            a(f"""
            s_cmp_lg_u32 s14, 8
            s_cbranch_scc1 {L('exit')}
            s_waitcnt lgkmcnt(0)
            s_sub_u32 s3, s{64+2*spin}, s64
            s_lshl_b32 s3, s3, 2
            s_add_u32 s3, s3, s{64+2*(st.n-1)}
            """)
            a.label(L('spin'))
            a(f"s_memrealtime s[4:5]\ns_waitcnt lgkmcnt(0)\ns_sub_u32 s4, s4, s3\ns_cmp_lt_i32 s4, 0\ns_cbranch_scc1 {L('spin')}")
        elif dbg:
            a(f"""
            s_cmp_lg_u32 s14, 8
            s_cbranch_scc1 {L('exit')}
            s_waitcnt lgkmcnt(0)
            s_not_b32 s64, s64
            s_mov_b64 exec, 1
            """)
            for i in range(st.n): a(f"v_mov_b32 v{i}, s{64+2*i}\nbuffer_atomic_umax v{i}, off, s[52:55], 0 offset:{4+4*i}")
            a("s_waitcnt vmcnt(0)")
        else: st.dump(14, 12, 0, slot=0)
    a.label(L('exit'))
    a("s_endpgm")
    return a, st.n

HDR = open("gated_mix__mha_block__dense_activation_mish__prompt.s.ref").read().split("; Override launch")[0].rstrip()
def write(path, ts=0):
    name = "gated_mix__mha_block__dense_activation_mish__prompt_kernel"
    a, n = gen(name, ts)
    h = check(a.lines, verbose=(ts == 0))
    if h: print("hazards:", h)
    code, desc = kernel_wrap(name, a.text(), 168)
    open(path, "w").write(f"{HDR}\n; @launch grid=(256,1,1) block=(768,1,1) lds={LDS_BYTES}\n" + '.amdgcn_target "amdgcn-amd-amdhsa--gfx950"\n.text\n' + code + '.section .rodata,"a"\n' + desc)
    return n

if __name__ == "__main__":
    for spec in sys.argv[1:] or ["base"]:
        base = dict(CFG)
        for kv in spec.split("+"):
            if "=" in kv: k, v = kv.split("="); CFG[k] = int(v)
        for ts in (0, 1, 2, 6, 7, 8, 9) + ((101, 104, 108, 109, 110, 112) if spec == "base" else ()):
            n = write(f"f_{spec.replace('=', '')}{'_ts%d' % ts if ts else ''}.s", ts)
        CFG.update(base)
```
